```python
import torch

def _softmax(x, axis=-1):
    return torch.softmax(x, dim=axis)
def _gelu(x):
    return torch.nn.functional.gelu(x, approximate="tanh")
def _silu(x):
    return torch.nn.functional.silu(x)
def _sigmoid(x):
    return torch.sigmoid(x)
def _layernorm(x, axis=-1, eps=1e-5):
    m = x.mean(dim=axis, keepdim=True)
    v = x.var(dim=axis, keepdim=True, unbiased=False)
    return (x - m) / torch.sqrt(v + eps)
def _scatter_add(tgt, idx, src, axis=0):
    return tgt.clone().index_add_(axis, idx, src)
def _segment_sum(src, seg, n):
    out = torch.zeros((n,) + src.shape[1:], dtype=src.dtype)
    return out.index_add_(0, seg, src)
def _pad(x, pw):
    flat = tuple(v for pair in reversed(pw) for v in pair)
    return torch.nn.functional.pad(x, flat)

kernel_name = 'sequential_preLN__gqa_block_cached__dense_activation_squared_relu__decode'

def setup_inputs():

    _w = (lambda a: (lambda t: t.to(torch.bfloat16) if t.is_floating_point() else t)(torch.as_tensor(a)))
    def _A_setup():
        B, Sq, D = 1, 1, 576
        Hq, Hkv, Sk, Dh = 32, 16, 65536, 128
        assert Hq % Hkv == 0, (Hq, Hkv)
        return {
            "x": _w((lambda *s: torch.randn(*s, dtype=torch.bfloat16) * 0.05)(B, Sq, D)),
            "k_cache": _w((lambda *s: torch.randn(*s, dtype=torch.bfloat16) * 3.2)(B, Hkv, Sk, Dh)),
            "v_cache": _w((lambda *s: torch.randn(*s, dtype=torch.bfloat16) * 0.4)(B, Hkv, Sk, Dh)),
            "wq": _w((lambda *s: torch.randn(*s, dtype=torch.bfloat16) * 3.2)(D, Hq * Dh) * (D ** -0.5)),
            "wo": _w((lambda *s: torch.randn(*s, dtype=torch.bfloat16) * 0.4)(Hq * Dh, D) * ((Hq * Dh) ** -0.5)),
        }
    _A_in = _A_setup()

    def _B_setup():
        B, S, D, F = 1, 1, 576, 4608
        return {
            "x": _w((lambda *s: torch.randn(*s, dtype=torch.bfloat16) * 0.05)(B, S, D)),
            "w1": _w((lambda *s: torch.randn(*s, dtype=torch.bfloat16) * 0.05)(D, F)),
            "b1": _w((lambda *s: torch.randn(*s, dtype=torch.bfloat16) * 0.05)(F)),
            "w2": _w((lambda *s: torch.randn(*s, dtype=torch.bfloat16) * 0.05)(F, D)),
            "b2": _w((lambda *s: torch.randn(*s, dtype=torch.bfloat16) * 0.05)(D)),
        }
    _B_in = _B_setup()

    return {
        "A_x": _A_in["x"],
        "A_k_cache": _A_in["k_cache"],
        "A_v_cache": _A_in["v_cache"],
        "A_wq": _A_in["wq"],
        "A_wo": _A_in["wo"],
        "B_x": _B_in["x"],
        "B_w1": _B_in["w1"],
        "B_b1": _B_in["b1"],
        "B_w2": _B_in["w2"],
        "B_b2": _B_in["b2"],
    }

def reference(A_x, A_k_cache, A_v_cache, A_wq, A_wo, B_x, B_w1, B_b1, B_w2, B_b2):
    def _A_ref(x, k_cache, v_cache, wq, wo):
        B, Sq, D = x.shape
        Hq, Dh = 32, 128
        Hkv = k_cache.shape[1]
        rep = Hq // Hkv
        q = (lambda x, *d: x.permute(*d))((x @ wq).reshape(B, Sq, Hq, Dh), 0, 2, 1, 3)
        k = (lambda x, n, axis: torch.repeat_interleave(x, n, dim=axis))(k_cache, rep, axis=1)
        v = (lambda x, n, axis: torch.repeat_interleave(x, n, dim=axis))(v_cache, rep, axis=1)
        scores = torch.einsum("bhqd,bhkd->bhqk", q, k) * (Dh ** -0.5)
        p = _softmax(scores, axis=-1)
        o = torch.einsum("bhqk,bhkd->bhqd", p, v)
        return (lambda x, *d: x.permute(*d))(o, 0, 2, 1, 3).reshape(B, Sq, Hq * Dh) @ wo

    def _B_ref(x, w1, b1, w2, b2):
        h = torch.einsum("bsd,df->bsf", x, w1) + b1
        zero = torch.zeros_like(h)
        r = torch.where(h > zero, h, zero)
        h = r * r
        out = torch.einsum("bsf,fd->bsd", h, w2) + b2
        return out

    x = A_x
    h = x + _A_ref(_layernorm(x, axis=-1), A_k_cache, A_v_cache, A_wq, A_wo)
    h2 = h + _B_ref(_layernorm(h, axis=-1), B_w1, B_b1, B_w2, B_b2)
    return h2
```

```python
import struct, sys

NAME = "sequential_preLN__gqa_block_cached__dense_activation_squared_relu__decode"

def f2u(f):
    return struct.unpack("<I", struct.pack("<f", f))[0]

class A:
    def __init__(self):
        self.l = []
    def __call__(self, s):
        for line in s.strip("\n").split("\n"):
            self.l.append("    " + line.strip())
    def label(self, s):
        self.l.append(s + ":")
    def raw(self, s):
        self.l.append(s)
    def text(self):
        return "\n".join(self.l) + "\n"

WS_Q = 0
WS_PO = 0x10000
WS_PML = 0x50000
WS_PA = 0x60000
WS_H = 0x80000
WS_PM = 0x90000
WS_BYTES = 0x100000

LOG2E = 1.4426950408889634
SCALE = 128 ** -0.5

def srd(a, d, b, nbytes):
    a(f"""
    s_mov_b32 s{d}, s{b}
    s_and_b32 s{d+1}, s{b+1}, 0xffff
    s_mov_b32 s{d+2}, {nbytes}
    s_mov_b32 s{d+3}, 0x00020000
    """)

def kernel_begin(a, name):
    a.raw(f".globl {name}")
    a.raw(".p2align 8")
    a.raw(f".type {name},@function")
    a.label(name)

def kd(name, vgpr, sgpr=102):
    acc = (vgpr + 3) // 4 * 4
    return f""".amdhsa_kernel {name}
  .amdhsa_next_free_vgpr {vgpr}
  .amdhsa_next_free_sgpr {sgpr}
  .amdhsa_accum_offset {acc}
  .amdhsa_group_segment_fixed_size 0
  .amdhsa_kernarg_size 104
  .amdhsa_user_sgpr_count 2
  .amdhsa_user_sgpr_kernarg_segment_ptr 1
  .amdhsa_system_sgpr_workgroup_id_x 1
.end_amdhsa_kernel
"""

def wave_sum_to_sgpr(a, v, s):
    a(f"""
    s_nop 1
    v_add_f32_dpp v{v}, v{v}, v{v} row_shr:1 row_mask:0xf bank_mask:0xf bound_ctrl:0
    s_nop 1
    v_add_f32_dpp v{v}, v{v}, v{v} row_shr:2 row_mask:0xf bank_mask:0xf bound_ctrl:0
    s_nop 1
    v_add_f32_dpp v{v}, v{v}, v{v} row_shr:4 row_mask:0xf bank_mask:0xf bound_ctrl:0
    s_nop 1
    v_add_f32_dpp v{v}, v{v}, v{v} row_shr:8 row_mask:0xf bank_mask:0xf bound_ctrl:0
    s_nop 1
    v_add_f32_dpp v{v}, v{v}, v{v} row_bcast:15 row_mask:0xa bank_mask:0xf
    s_nop 1
    v_add_f32_dpp v{v}, v{v}, v{v} row_bcast:31 row_mask:0xc bank_mask:0xf
    s_nop 1
    v_readlane_b32 s{s}, v{v}, 63
    s_nop 3
    """)

def rne(a, d, s):
    a(f"""
    v_cvt_pk_bf16_f32 v{d}, v{s}, v{s}
    v_lshlrev_b32 v{d}, 16, v{d}
    """)

def layernorm9(a, f, t, sA):
    a(f"v_add_f32 v{t}, v{f}, v{f+1}")
    for i in range(2, 9):
        a(f"v_add_f32 v{t}, v{t}, v{f+i}")
    wave_sum_to_sgpr(a, t, sA)
    a(f"v_mov_b32 v{t+1}, {hex(f2u(1.0/576.0))}")
    a(f"v_mul_f32 v{t+1}, s{sA}, v{t+1}")
    a(f"v_sub_f32 v{t+2}, v{f}, v{t+1}")
    a(f"v_mul_f32 v{t}, v{t+2}, v{t+2}")
    for i in range(1, 9):
        a(f"v_sub_f32 v{t+2}, v{f+i}, v{t+1}")
        a(f"v_fmac_f32 v{t}, v{t+2}, v{t+2}")
    wave_sum_to_sgpr(a, t, sA)
    a(f"v_mov_b32 v{t+2}, {hex(f2u(1.0/576.0))}")
    a(f"v_mul_f32 v{t+2}, s{sA}, v{t+2}")
    rne(a, t+1, t+1)
    rne(a, t+2, t+2)
    a(f"v_add_f32 v{t+2}, {hex(f2u(1e-5))}, v{t+2}")
    rne(a, t+2, t+2)
    a(f"v_sqrt_f32 v{t+2}, v{t+2}")
    a("s_nop 0")
    rne(a, t+2, t+2)
    a(f"v_rcp_f32 v{t+3}, v{t+2}")
    a("s_nop 0")
    for i in range(9):
        a(f"v_sub_f32 v{f+i}, v{f+i}, v{t+1}")
        rne(a, f+i, f+i)
        a(f"v_mul_f32 v{t+4}, v{f+i}, v{t+3}")
        a(f"v_fma_f32 v{t+5}, -v{t+4}, v{t+2}, v{f+i}")
        a(f"v_fma_f32 v{t+4}, v{t+5}, v{t+3}, v{t+4}")
        rne(a, f+i, t+4)

def k1_qproj(a):
    name = "qproj_kernel"
    kernel_begin(a, name)
    a(f"""
    s_cmp_ge_u32 s2, 64
    s_cbranch_scc1 L_k1_end
    s_load_dwordx2 s[4:5], s[0:1], 0
    s_load_dwordx2 s[6:7], s[0:1], 24
    s_load_dwordx2 s[8:9], s[0:1], 96
    v_lshrrev_b32 v1, 6, v0
    v_and_b32 v2, 63, v0
    s_nop 0
    v_readfirstlane_b32 s3, v1
    s_waitcnt lgkmcnt(0)
    """)
    srd(a, 12, 4, 1152)
    srd(a, 16, 6, 576*4096*2)
    srd(a, 20, 8, WS_BYTES)
    a(f"""
    s_mul_i32 s24, s3, 144*8192
    s_lshl_b32 s25, s2, 7
    s_add_u32 s24, s24, s25
    v_lshrrev_b32 v3, 3, v2
    v_lshlrev_b32 v3, 13, v3
    v_and_b32 v4, 7, v2
    v_lshlrev_b32 v4, 4, v4
    v_add3_u32 v3, v3, v4, s24
    """)
    W = 32
    for i in range(18):
        a(f"s_mov_b32 s26, {i*65536}")
        a(f"buffer_load_dwordx4 v[{W+4*i}:{W+4*i+3}], v3, s[16:19], s26 offen")
    a("v_lshlrev_b32 v5, 1, v2")
    F = 8
    for i in range(9):
        a(f"buffer_load_ushort v{F+i}, v5, s[12:15], 0 offen offset:{128*i}")
    a("s_waitcnt vmcnt(0)")
    for i in range(9):
        a(f"v_lshlrev_b32 v{F+i}, 16, v{F+i}")
    layernorm9(a, F, 20, 27)
    a(f"""
    s_mul_i32 s28, s3, 2304
    v_lshlrev_b32 v5, 2, v2
    v_add_u32 v5, s28, v5
    """)
    for i in range(9):
        a(f"ds_write_b32 v5, v{F+i} offset:{256*i}")
    a(f"""
    s_mul_i32 s29, s3, 576
    s_add_u32 s29, s29, s28
    v_lshrrev_b32 v6, 3, v2
    v_lshlrev_b32 v6, 2, v6
    v_add_u32 v6, s29, v6
    s_waitcnt lgkmcnt(0)
    """)
    X = 104
    for i in range(18):
        a(f"ds_read_b32 v{X+i}, v6 offset:{32*i}")
    ACC = 124
    for c in range(8):
        a(f"v_mov_b32 v{ACC+c}, 0")
    a("s_waitcnt lgkmcnt(0)")
    for i in range(18):
        for d in range(4):
            w = W + 4*i + d
            a(f"v_lshlrev_b32 v20, 16, v{w}")
            a(f"v_and_b32 v21, 0xffff0000, v{w}")
            a(f"v_fmac_f32 v{ACC+2*d}, v{X+i}, v20")
            a(f"v_fmac_f32 v{ACC+2*d+1}, v{X+i}, v21")
    a(f"""
    v_lshlrev_b32 v7, 5, v0
    ds_write_b128 v7, v[{ACC}:{ACC+3}] offset:9216
    ds_write_b128 v7, v[{ACC+4}:{ACC+7}] offset:9232
    s_waitcnt lgkmcnt(0)
    s_barrier
    s_cmp_lg_u32 s3, 0
    s_cbranch_scc1 L_k1_end
    v_lshlrev_b32 v7, 2, v2
    """)
    for p in range(32):
        a(f"ds_read_b32 v{32+p}, v7 offset:{9216+256*p}")
    a("s_waitcnt lgkmcnt(0)")
    for p in range(1, 32):
        a(f"v_add_f32 v32, v32, v{32+p}")
    a(f"""
    v_cvt_pk_bf16_f32 v33, v32, v32
    s_lshl_b32 s25, s2, 7
    v_lshlrev_b32 v7, 1, v2
    v_add_u32 v7, s25, v7
    buffer_store_short v33, v7, s[20:23], 0 offen offset:{WS_Q}
    s_waitcnt vmcnt(0)
    """)
    a.label("L_k1_end")
    a("s_endpgm")
    return name, 132

def k2_attn(a):
    name = "attn_kernel"
    kernel_begin(a, name)
    NT = " nt"
    a(f"""
    s_cmp_ge_u32 s2, 256
    s_cbranch_scc1 L_k2_end
    s_load_dwordx2 s[4:5], s[0:1], 8
    s_load_dwordx2 s[6:7], s[0:1], 16
    s_load_dwordx2 s[8:9], s[0:1], 96
    v_lshrrev_b32 v1, 6, v0
    v_and_b32 v2, 63, v0
    s_nop 0
    v_readfirstlane_b32 s3, v1
    s_waitcnt lgkmcnt(0)
    """)
    a(f"""
    s_lshl_b32 s24, s2, 3
    s_add_u32 s24, s24, s3
    s_lshl_b32 s24, s24, 17
    s_add_u32 s4, s4, s24
    s_addc_u32 s5, s5, 0
    s_add_u32 s6, s6, s24
    s_addc_u32 s7, s7, 0
    """)
    srd(a, 12, 4, 131072)
    srd(a, 16, 6, 131072)
    srd(a, 20, 8, WS_BYTES)
    a(f"""
    v_and_b32 v3, 3, v2
    v_lshlrev_b32 v3, 2, v3
    v_bfe_u32 v4, v2, 2, 2
    v_add_u32 v3, v3, v4
    v_lshlrev_b32 v3, 8, v3
    v_lshrrev_b32 v4, 4, v2
    v_lshlrev_b32 v5, 4, v4
    v_add_u32 v3, v3, v5
    v_lshlrev_b32 v6, 4, v2
    """)
    RING = 64
    Q = 192
    ACC = 224
    D0 = 240; D1 = 244
    def issue_loads(slot, soff):
        kb = RING + 32*slot
        vb = kb + 16
        for j in range(4):
            a(f"buffer_load_dwordx4 v[{kb+4*j}:{kb+4*j+3}], v3, s[12:15], {soff} offen offset:{64*j}{NT}")
        for i in range(4):
            a(f"buffer_load_dwordx4 v[{vb+4*i}:{vb+4*i+3}], v6, s[16:19], {soff} offen offset:{1024*i}{NT}")
    a(f"""
    s_lshr_b32 s25, s2, 4
    s_lshl_b32 s25, s25, 9
    v_add_u32 v7, s25, v5
    """)
    for hh in range(2):
        for j in range(4):
            r = Q + 16*hh + 4*j
            a(f"buffer_load_dwordx4 v[{r}:{r+3}], v7, s[20:23], 0 offen offset:{WS_Q + 256*hh + 64*j}")
    a("s_mov_b32 s30, 0")
    issue_loads(0, "s30")
    a("s_mov_b32 s30, 4096")
    issue_loads(1, "s30")
    a("s_mov_b32 s30, 8192")
    issue_loads(2, "s30")
    a("s_mov_b32 s30, 12288")
    a(f"""
    s_mov_b32 s32, {hex(f2u(SCALE))}
    s_mov_b32 s33, {hex(f2u(LOG2E))}
    s_mov_b32 s34, 0x05040100
    s_mov_b32 s35, 0x07060302
    s_mov_b32 s36, {hex(f2u(24.0))}
    s_mov_b32 s31, 0
    """)
    for i in range(16):
        a(f"v_mov_b32 v{ACC+i}, 0")
    NM = 8
    L = 10
    a(f"""
    v_mov_b32 v{NM}, {hex(f2u(1e30))}
    v_mov_b32 v{NM+1}, {hex(f2u(1e30))}
    v_mov_b32 v{L}, 0
    v_mov_b32 v{L+1}, 0
    """)
    S = 12
    T = 20
    R = 28
    PP = 32
    TM = 36
    a.label("L_k2_loop")
    for slot in range(4):
        kb = RING + 32*slot
        vb = kb + 16
        issue_loads((slot+3) % 4, "s30")
        a("s_add_u32 s30, s30, 4096")
        a("s_waitcnt vmcnt(28)")
        for j in range(4):
            c0 = "0" if j == 0 else f"v[{D0}:{D0+3}]"
            c1 = "0" if j == 0 else f"v[{D1}:{D1+3}]"
            a(f"v_mfma_f32_16x16x32_bf16 v[{D0}:{D0+3}], v[{kb+4*j}:{kb+4*j+3}], v[{Q+4*j}:{Q+4*j+3}], {c0}")
            a(f"v_mfma_f32_16x16x32_bf16 v[{D1}:{D1+3}], v[{kb+4*j}:{kb+4*j+3}], v[{Q+16+4*j}:{Q+16+4*j+3}], {c1}")
        a("s_nop 7")
        a("s_nop 1")
        for h, D in enumerate((D0, D1)):
            a(f"v_cvt_pk_bf16_f32 v{R+2*h}, v{D}, v{D+1}")
            a(f"v_cvt_pk_bf16_f32 v{R+2*h+1}, v{D+2}, v{D+3}")
        for k in range(4):
            a(f"v_lshlrev_b32 v{S+2*k}, 16, v{R+k}")
            a(f"v_and_b32 v{S+2*k+1}, 0xffff0000, v{R+k}")
        for k in range(8):
            a(f"v_mul_f32 v{S+k}, s32, v{S+k}")
        for k in range(4):
            a(f"v_cvt_pk_bf16_f32 v{R+k}, v{S+2*k}, v{S+2*k+1}")
        for k in range(4):
            a(f"v_lshlrev_b32 v{S+2*k}, 16, v{R+k}")
            a(f"v_and_b32 v{S+2*k+1}, 0xffff0000, v{R+k}")
        a.label(f"L_k2_retry{slot}")
        for k in range(8):
            a(f"v_fma_f32 v{T+k}, v{S+k}, s33, v{NM + k//4}")
        a(f"""
        v_max3_f32 v{TM}, v{T}, v{T+1}, v{T+2}
        v_max3_f32 v{TM+1}, v{T+3}, v{T+4}, v{T+5}
        v_max3_f32 v{TM}, v{TM}, v{T+6}, v{T+7}
        v_max_f32 v{TM}, v{TM}, v{TM+1}
        v_cmp_lt_f32 vcc, s36, v{TM}
        s_cbranch_vccnz L_k2_rescale{slot}
        """)
        for k in range(8):
            a(f"v_exp_f32 v{T+k}, v{T+k}")
        a("s_nop 0")
        for h in range(2):
            a(f"v_cvt_pk_bf16_f32 v{PP+2*h}, v{T+4*h}, v{T+4*h+1}")
            a(f"v_cvt_pk_bf16_f32 v{PP+2*h+1}, v{T+4*h+2}, v{T+4*h+3}")
        for h in range(2):
            a(f"v_add_f32 v{TM}, v{T+4*h}, v{T+4*h+1}")
            a(f"v_add_f32 v{TM+1}, v{T+4*h+2}, v{T+4*h+3}")
            a(f"v_add_f32 v{TM}, v{TM}, v{TM+1}")
            a(f"v_add_f32 v{L+h}, v{L+h}, v{TM}")
        a("s_waitcnt vmcnt(24)")
        for pr in range(2):
            va = vb + 8*pr
            vbb = va + 4
            for c in range(4):
                lo = TM + 2 + 2*(c % 2)
                hi = lo + 1
                a(f"v_perm_b32 v{lo}, v{vbb+c}, v{va+c}, s34")
                a(f"v_perm_b32 v{hi}, v{vbb+c}, v{va+c}, s35")
                for h in range(2):
                    a(f"v_dot2_f32_bf16 v{ACC+8*h+2*c}, v{lo}, v{PP+2*h+pr}, v{ACC+8*h+2*c}")
                    a(f"v_dot2_f32_bf16 v{ACC+8*h+2*c+1}, v{hi}, v{PP+2*h+pr}, v{ACC+8*h+2*c+1}")
    a(f"""
    s_add_u32 s31, s31, 1
    s_cmp_lt_u32 s31, 8
    s_cbranch_scc1 L_k2_loop
    s_branch L_k2_tail
    """)
    for slot in range(4):
        a.label(f"L_k2_rescale{slot}")
        for h in range(2):
            a(f"""
            v_max3_f32 v{TM}, v{S+4*h}, v{S+4*h+1}, v{S+4*h+2}
            v_max_f32 v{TM}, v{TM}, v{S+4*h+3}
            v_mul_f32 v{TM}, s33, v{TM}
            v_max_f32 v{TM}, v{TM}, -v{NM+h}
            v_sub_f32 v{TM+1}, 0, v{TM}
            v_sub_f32 v{TM+2}, v{TM+1}, v{NM+h}
            v_exp_f32 v{TM+2}, v{TM+2}
            v_mov_b32 v{NM+h}, v{TM+1}
            s_nop 0
            v_mul_f32 v{L+h}, v{L+h}, v{TM+2}
            """)
            for i in range(8):
                a(f"v_mul_f32 v{ACC+8*h+i}, v{ACC+8*h+i}, v{TM+2}")
        a(f"s_branch L_k2_retry{slot}")
    a.label("L_k2_tail")
    a("s_waitcnt vmcnt(0)")
    LDS_ML = 32768
    a(f"""
    v_lshrrev_b32 v4, 4, v2
    s_lshl_b32 s25, s3, 2
    v_add_u32 v4, s25, v4
    v_lshlrev_b32 v5, 10, v4
    v_and_b32 v7, 15, v2
    v_lshlrev_b32 v7, 5, v7
    v_add_u32 v5, v5, v7
    ds_write_b128 v5, v[{ACC}:{ACC+3}]
    ds_write_b128 v5, v[{ACC+4}:{ACC+7}] offset:16
    ds_write_b128 v5, v[{ACC+8}:{ACC+11}] offset:512
    ds_write_b128 v5, v[{ACC+12}:{ACC+15}] offset:528
    v_lshlrev_b32 v4, 4, v4
    v_sub_f32 v12, 0, v{NM}
    v_mov_b32 v13, v{L}
    v_sub_f32 v14, 0, v{NM+1}
    v_mov_b32 v15, v{L+1}
    ds_write_b128 v4, v[12:15] offset:{LDS_ML}
    s_waitcnt lgkmcnt(0)
    s_barrier
    s_cmp_ge_u32 s3, 4
    s_cbranch_scc1 L_k2_end
    """)
    a(f"""
    v_lshrrev_b32 v4, 7, v0
    v_lshlrev_b32 v5, 3, v4
    v_and_b32 v7, 127, v0
    v_lshlrev_b32 v8, 2, v7
    v_lshl_add_u32 v8, v4, 9, v8
    """)
    ML = 64
    AC = 128
    for p in range(32):
        a(f"ds_read_b64 v[{ML+2*p}:{ML+2*p+1}], v5 offset:{LDS_ML + 16*p}")
    for p in range(32):
        a(f"ds_read_b32 v{AC+p}, v8 offset:{1024*p}")
    a("s_waitcnt lgkmcnt(0)")
    a(f"v_mov_b32 v10, v{ML}")
    for p in range(1, 32):
        a(f"v_max_f32 v10, v10, v{ML+2*p}")
    a("v_mov_b32 v11, 0")
    a("v_mov_b32 v12, 0")
    for p in range(32):
        a(f"v_sub_f32 v{ML+2*p}, v{ML+2*p}, v10")
        a(f"v_exp_f32 v{ML+2*p}, v{ML+2*p}")
    a("s_nop 0")
    for p in range(32):
        a(f"v_fmac_f32 v11, v{ML+2*p}, v{ML+2*p+1}")
        a(f"v_fmac_f32 v12, v{ML+2*p}, v{AC+p}")
    a(f"""
    s_lshl_b32 s25, s2, 10
    v_lshlrev_b32 v13, 2, v0
    v_add_u32 v13, s25, v13
    s_mov_b32 s26, {WS_PO}
    buffer_store_dword v12, v13, s[20:23], s26 offen
    s_lshl_b32 s25, s2, 4
    v_add_u32 v13, s25, v5
    s_mov_b32 s26, {WS_PML}
    v_cmp_eq_u32 vcc, 0, v7
    s_and_saveexec_b64 s[40:41], vcc
    buffer_store_dwordx2 v[10:11], v13, s[20:23], s26 offen
    s_waitcnt vmcnt(0)
    """)
    a.label("L_k2_end")
    a("s_endpgm")
    return name, 248

def k3_wo(a):
    name = "wo_kernel"
    kernel_begin(a, name)
    a(f"""
    s_cmp_ge_u32 s2, 288
    s_cbranch_scc1 L_k3_end
    s_load_dwordx2 s[6:7], s[0:1], 32
    s_load_dwordx2 s[8:9], s[0:1], 96
    v_lshrrev_b32 v1, 6, v0
    v_and_b32 v2, 63, v0
    s_nop 0
    v_readfirstlane_b32 s3, v1
    s_waitcnt lgkmcnt(0)
    """)
    srd(a, 16, 6, 4096*576*2)
    srd(a, 20, 8, WS_BYTES)
    a(f"""
    s_mul_i32 s24, s2, 7282
    s_lshr_b32 s24, s24, 16
    s_mul_i32 s25, s24, 9
    s_sub_u32 s25, s2, s25
    """)
    a(f"""
    s_lshl_b32 s26, s24, 7
    s_lshl_b32 s27, s3, 5
    s_add_u32 s26, s26, s27
    v_lshrrev_b32 v3, 3, v2
    v_add_u32 v3, s26, v3
    s_movk_i32 s27, 1152
    v_mul_lo_u32 v3, v3, s27
    v_and_b32 v4, 7, v2
    v_lshlrev_b32 v4, 4, v4
    s_lshl_b32 s27, s25, 7
    v_add3_u32 v3, v3, v4, s27
    """)
    W = 16
    for i in range(4):
        a(f"s_mov_b32 s28, {i*8*1152}")
        a(f"buffer_load_dwordx4 v[{W+4*i}:{W+4*i+3}], v3, s[16:19], s28 offen")
    a(f"""
    s_cmp_ge_u32 s3, 2
    s_cbranch_scc1 L_k3_skip
    s_lshr_b32 s26, s24, 1
    s_lshl_b32 s26, s26, 5
    s_and_b32 s27, s24, 1
    s_add_u32 s26, s26, s27
    s_lshl_b32 s27, s26, 3
    s_add_u32 s27, s27, {WS_PML}
    s_lshl_b32 s28, s26, 9
    s_add_u32 s28, s28, {WS_PO}
    v_mov_b32 v5, 0
    v_lshlrev_b32 v6, 2, v0
    """)
    ML = 32; OO = 64
    for i in range(16):
        a(f"buffer_load_dwordx2 v[{ML+2*i}:{ML+2*i+1}], v5, s[20:23], s27 offen offset:{16*i}")
    for i in range(16):
        if i % 4 == 0 and i > 0:
            a("s_add_u32 s28, s28, 4096")
        a(f"buffer_load_dword v{OO+i}, v6, s[20:23], s28 offen offset:{1024*(i%4)}")
    a("s_waitcnt vmcnt(0)")
    a(f"v_mov_b32 v10, v{ML}")
    for p in range(1, 16):
        a(f"v_max_f32 v10, v10, v{ML+2*p}")
    a("v_mov_b32 v11, 0")
    a("v_mov_b32 v12, 0")
    for p in range(16):
        a(f"v_sub_f32 v{ML+2*p}, v{ML+2*p}, v10")
        a(f"v_exp_f32 v{ML+2*p}, v{ML+2*p}")
    a("s_nop 0")
    for p in range(16):
        a(f"v_fmac_f32 v11, v{ML+2*p}, v{ML+2*p+1}")
        a(f"v_fmac_f32 v12, v{ML+2*p}, v{OO+p}")
    a(f"""
    v_rcp_f32 v13, v11
    s_nop 0
    v_mul_f32 v14, v12, v13
    v_fma_f32 v15, -v14, v11, v12
    v_fma_f32 v14, v15, v13, v14
    """)
    rne(a, 14, 14)
    a("ds_write_b32 v6, v14")
    a.label("L_k3_skip")
    a(f"""
    s_waitcnt vmcnt(0) lgkmcnt(0)
    s_barrier
    s_lshl_b32 s26, s3, 7
    v_lshrrev_b32 v5, 3, v2
    v_lshlrev_b32 v5, 2, v5
    v_add_u32 v5, s26, v5
    """)
    X = 40
    for i in range(4):
        a(f"ds_read_b32 v{X+i}, v5 offset:{32*i}")
    ACC = 48
    for c in range(8):
        a(f"v_mov_b32 v{ACC+c}, 0")
    a("s_waitcnt lgkmcnt(0)")
    for i in range(4):
        for d in range(4):
            w = W + 4*i + d
            a(f"v_lshlrev_b32 v10, 16, v{w}")
            a(f"v_and_b32 v11, 0xffff0000, v{w}")
            a(f"v_fmac_f32 v{ACC+2*d}, v{X+i}, v10")
            a(f"v_fmac_f32 v{ACC+2*d+1}, v{X+i}, v11")
    a(f"""
    v_lshlrev_b32 v7, 5, v0
    ds_write_b128 v7, v[{ACC}:{ACC+3}] offset:1024
    ds_write_b128 v7, v[{ACC+4}:{ACC+7}] offset:1040
    s_waitcnt lgkmcnt(0)
    s_barrier
    s_cmp_lg_u32 s3, 0
    s_cbranch_scc1 L_k3_end
    v_lshlrev_b32 v7, 2, v2
    """)
    for p in range(32):
        a(f"ds_read_b32 v{64+p}, v7 offset:{1024+256*p}")
    a("s_waitcnt lgkmcnt(0)")
    for p in range(1, 32):
        a(f"v_add_f32 v64, v64, v{64+p}")
    a(f"""
    s_mul_i32 s26, s24, 2304
    s_lshl_b32 s27, s25, 8
    s_add_u32 s26, s26, s27
    s_add_u32 s26, s26, {WS_PA}
    buffer_store_dword v64, v7, s[20:23], s26 offen
    s_waitcnt vmcnt(0)
    """)
    a.label("L_k3_end")
    a("s_endpgm")
    return name, 96

def k4_mlp(a):
    name = "mlp_kernel"
    kernel_begin(a, name)
    a(f"""
    s_cmp_ge_u32 s2, 144
    s_cbranch_scc1 L_k4_end
    s_load_dwordx2 s[4:5], s[0:1], 0
    s_load_dwordx2 s[6:7], s[0:1], 48
    s_load_dwordx2 s[8:9], s[0:1], 96
    s_load_dwordx2 s[10:11], s[0:1], 64
    s_load_dwordx2 s[44:45], s[0:1], 56
    v_lshrrev_b32 v1, 6, v0
    v_and_b32 v2, 63, v0
    s_nop 0
    v_readfirstlane_b32 s3, v1
    s_waitcnt lgkmcnt(0)
    """)
    srd(a, 12, 4, 1152)
    srd(a, 16, 6, 576*4608*2)
    srd(a, 20, 8, WS_BYTES)
    srd(a, 36, 10, 4608*576*2)
    srd(a, 40, 44, 4608*2)
    a("v_lshlrev_b32 v3, 2, v0")
    P = 16
    a(f"s_mov_b32 s24, {WS_PA}")
    for i in range(32):
        a(f"buffer_load_dword v{P+i}, v3, s[20:23], s24 offen")
        if i < 31:
            a("s_add_u32 s24, s24, 2304")
    a("v_lshlrev_b32 v4, 1, v0")
    a("buffer_load_ushort v5, v4, s[12:15], 0 offen")
    a(f"""
    s_lshl_b32 s24, s3, 6
    v_lshrrev_b32 v6, 2, v2
    v_add_u32 v6, s24, v6
    s_movk_i32 s25, 9216
    v_mul_lo_u32 v6, v6, s25
    v_and_b32 v7, 3, v2
    v_lshlrev_b32 v7, 4, v7
    s_lshl_b32 s25, s2, 6
    v_add3_u32 v6, v6, v7, s25
    """)
    W1 = 48
    for i in range(4):
        a(f"s_mov_b32 s26, {i*16*9216}")
        a(f"buffer_load_dwordx4 v[{W1+4*i}:{W1+4*i+3}], v6, s[16:19], s26 offen")
    W2 = 64
    a(f"s_mul_i32 s26, s2, {32*1152}")
    for r in range(32):
        a(f"buffer_load_ushort v{W2+r}, v4, s[36:39], s26 offen")
        if r < 31:
            a("s_add_u32 s26, s26, 1152")
    a(f"""
    v_and_b32 v8, 31, v0
    v_lshlrev_b32 v8, 1, v8
    s_lshl_b32 s26, s2, 6
    buffer_load_ushort v9, v8, s[40:43], s26 offen
    s_waitcnt vmcnt(37)
    """)
    for i in range(1, 32):
        a(f"v_add_f32 v{P}, v{P}, v{P+i}")
    rne(a, P, P)
    a(f"""
    v_lshlrev_b32 v5, 16, v5
    v_add_f32 v5, v5, v{P}
    """)
    rne(a, 5, 5)
    a(f"""
    ds_write_b32 v3, v5
    s_cmp_lg_u32 s2, 0
    s_cbranch_scc1 L_k4_noh
    s_mov_b32 s26, {WS_H}
    buffer_store_dword v5, v3, s[20:23], s26 offen
    """)
    a.label("L_k4_noh")
    a(f"""
    s_waitcnt lgkmcnt(0)
    s_barrier
    v_lshlrev_b32 v10, 2, v2
    """)
    F = 16
    for i in range(9):
        a(f"ds_read_b32 v{F+i}, v10 offset:{256*i}")
    a("s_waitcnt lgkmcnt(0)")
    layernorm9(a, F, 28, 27)
    a(f"""
    s_mul_i32 s28, s3, 2304
    s_add_u32 s28, s28, 4096
    v_add_u32 v10, s28, v10
    """)
    for i in range(9):
        a(f"ds_write_b32 v10, v{F+i} offset:{256*i}")
    a(f"""
    s_lshl_b32 s29, s3, 8
    s_add_u32 s29, s29, s28
    v_lshrrev_b32 v11, 2, v2
    v_lshlrev_b32 v11, 2, v11
    v_add_u32 v11, s29, v11
    s_waitcnt lgkmcnt(0)
    """)
    X = 28
    for i in range(4):
        a(f"ds_read_b32 v{X+i}, v11 offset:{64*i}")
    ACC = 32
    for c in range(8):
        a(f"v_mov_b32 v{ACC+c}, 0")
    a("s_waitcnt vmcnt(0) lgkmcnt(0)")
    for i in range(4):
        for d in range(4):
            w = W1 + 4*i + d
            a(f"v_lshlrev_b32 v12, 16, v{w}")
            a(f"v_and_b32 v13, 0xffff0000, v{w}")
            a(f"v_fmac_f32 v{ACC+2*d}, v{X+i}, v12")
            a(f"v_fmac_f32 v{ACC+2*d+1}, v{X+i}, v13")
    LP = 32768
    LP2 = LP + 18432
    LS = LP2 + 1152
    a(f"""
    v_lshlrev_b32 v7, 5, v0
    ds_write_b128 v7, v[{ACC}:{ACC+3}] offset:{LP}
    ds_write_b128 v7, v[{ACC+4}:{ACC+7}] offset:{LP+16}
    s_waitcnt lgkmcnt(0)
    s_barrier
    """)
    a(f"""
    v_and_b32 v8, 31, v0
    v_lshrrev_b32 v10, 5, v0
    v_lshlrev_b32 v11, 10, v10
    v_lshl_add_u32 v11, v8, 2, v11
    """)
    for i in range(8):
        a(f"ds_read_b32 v{16+i}, v11 offset:{LP+128*i}")
    a("s_waitcnt lgkmcnt(0)")
    for i in range(1, 8):
        a(f"v_add_f32 v16, v16, v{16+i}")
    LP2 = LP + 18432
    LS = LP2 + 2304
    a(f"""
    ds_write_b32 v3, v16 offset:{LP2}
    s_waitcnt lgkmcnt(0)
    s_barrier
    v_lshlrev_b32 v11, 2, v8
    """)
    for i in range(18):
        a(f"ds_read_b32 v{16+i}, v11 offset:{LP2+128*i}")
    a("s_waitcnt lgkmcnt(0)")
    for i in range(1, 18):
        a(f"v_add_f32 v16, v16, v{16+i}")
    rne(a, 16, 16)
    a(f"""
    v_lshlrev_b32 v9, 16, v9
    v_add_f32 v16, v16, v9
    """)
    rne(a, 16, 16)
    a(f"""
    v_max_f32 v16, 0, v16
    v_mul_f32 v16, v16, v16
    """)
    rne(a, 16, 16)
    a("v_mov_b32 v17, 0")
    a("s_nop 1")
    for r in range(32):
        a(f"v_readlane_b32 s{48+r}, v16, {r}")
    a("s_nop 3")
    for r in range(32):
        a(f"v_lshlrev_b32 v{W2+r}, 16, v{W2+r}")
        a(f"v_fmac_f32 v17, s{48+r}, v{W2+r}")
    a(f"""
    s_mul_i32 s26, s2, 2304
    s_add_u32 s26, s26, {WS_PM}
    buffer_store_dword v17, v3, s[20:23], s26 offen
    s_waitcnt vmcnt(0)
    """)
    a.label("L_k4_end")
    a("s_endpgm")
    return name, 96

def k5_final(a):
    name = "final_kernel"
    kernel_begin(a, name)
    a(f"""
    s_cmp_ge_u32 s2, 36
    s_cbranch_scc1 L_k5_end
    s_load_dwordx2 s[4:5], s[0:1], 72
    s_load_dwordx2 s[6:7], s[0:1], 80
    s_load_dwordx2 s[8:9], s[0:1], 96
    v_lshrrev_b32 v1, 6, v0
    s_nop 0
    v_readfirstlane_b32 s3, v1
    s_waitcnt lgkmcnt(0)
    """)
    srd(a, 12, 4, 1152)
    srd(a, 16, 6, 1152)
    srd(a, 20, 8, WS_BYTES)
    a(f"""
    v_and_b32 v2, 15, v0
    v_lshrrev_b32 v3, 4, v0
    s_movk_i32 s24, 9*2304
    v_mul_lo_u32 v4, v3, s24
    v_lshl_add_u32 v4, v2, 2, v4
    s_lshl_b32 s25, s2, 6
    s_add_u32 s26, s25, {WS_PM}
    """)
    for i in range(9):
        a(f"buffer_load_dword v{16+i}, v4, s[20:23], s26 offen")
        if i < 8:
            a("s_add_u32 s26, s26, 2304")
    a(f"""
    v_lshlrev_b32 v5, 2, v2
    s_add_u32 s26, s25, {WS_H}
    buffer_load_dword v6, v5, s[20:23], s26 offen
    v_lshlrev_b32 v7, 1, v2
    s_lshl_b32 s27, s2, 5
    buffer_load_ushort v8, v7, s[12:15], s27 offen
    s_waitcnt vmcnt(0)
    """)
    for i in range(1, 9):
        a(f"v_add_f32 v16, v16, v{16+i}")
    a(f"""
    v_lshlrev_b32 v9, 2, v0
    ds_write_b32 v9, v16
    s_waitcnt lgkmcnt(0)
    s_barrier
    s_cmp_lg_u32 s3, 0
    s_cbranch_scc1 L_k5_end
    """)
    for i in range(16):
        a(f"ds_read_b32 v{16+i}, v5 offset:{64*i}")
    a("s_waitcnt lgkmcnt(0)")
    for i in range(1, 16):
        a(f"v_add_f32 v16, v16, v{16+i}")
    rne(a, 16, 16)
    a(f"""
    v_lshlrev_b32 v8, 16, v8
    v_add_f32 v16, v16, v8
    """)
    rne(a, 16, 16)
    a(f"""
    v_add_f32 v16, v16, v6
    v_cvt_pk_bf16_f32 v16, v16, v16
    v_cmp_gt_u32 vcc, 16, v0
    s_and_saveexec_b64 s[30:31], vcc
    buffer_store_short v16, v7, s[16:19], s27 offen
    s_waitcnt vmcnt(0)
    """)
    a.label("L_k5_end")
    a("s_endpgm")
    return name, 32

def main():
    a = A()
    hdr = open(f"cdna_kernels/{NAME}.s.ref").read().split("; Override launch")[0]
    launches = [
        ("qproj_kernel", 64, 256, 9216 + 8192),
        ("attn_kernel", 256, 512, 32768 + 512),
        ("wo_kernel", 288, 256, 1024 + 8192),
        ("mlp_kernel", 144, 576, 32768 + 18432 + 2304 + 256),
        ("final_kernel", 36, 256, 1024),
    ]
    out = hdr
    for n, g, b, lds in launches:
        out += f"; @launch kernel={n} grid=({g},1,1) block=({b},1,1) lds={lds}\n"
    out += '.amdgcn_target "amdgcn-amd-amdhsa--gfx950"\n.text\n'
    kds = []
    for f in (k1_qproj, k2_attn, k3_wo, k4_mlp, k5_final):
        kds.append(f(a))
    out += a.text()
    out += '.section .rodata,"a"\n'
    for n, v in kds:
        out += ".p2align 6\n" + kd(n, v)
    dst = sys.argv[1] if len(sys.argv) > 1 else f"cdna_kernels/{NAME}.s"
    open(dst, "w").write(out)

main()
```

```python
import struct, sys

NAME = "sequential_preLN__gqa_block_cached__dense_activation_squared_relu__decode"
STAMP = "--stamp" in sys.argv

def f2u(f):
    return struct.unpack("<I", struct.pack("<f", f))[0]

class A:
    def __init__(self):
        self.l = []
    def __call__(self, s):
        for line in s.strip("\n").split("\n"):
            if line.strip():
                self.l.append("    " + line.strip())
    def label(self, s):
        self.l.append(s + ":")
    def raw(self, s):
        self.l.append(s)
    def text(self):
        return "\n".join(self.l) + "\n"

WS_Q = 0
WS_PO = 0x10000
WS_PA = 0x100000
WS_H = 0x1A0000
WS_PM = 0x1B0000
WS_ST = 0x300000
WS_BYTES = 0x400000

L_XN = 0
L_QP = L_XN + 3072
L_QL = L_QP + 2048
L_CB = L_QL + 512
L_CM = L_CB + 8192
L_O = L_CM + 128
L_RD = L_O + 128
L_HN = L_RD + 8192
L_WO = L_HN + 2304
L_W1 = L_WO + 18432
L_W2 = L_W1 + 36864
L_END = L_W2 + 36864 + 256

LOG2E = 1.4426950408889634
SCALE = 128 ** -0.5
N_D = 144
C0 = 144
N_C = 36
SPIN_MAX = 20000

def srd(a, d, b, nbytes):
    a(f"""
    s_mov_b32 s{d}, s{b}
    s_and_b32 s{d+1}, s{b+1}, 0xffff
    s_mov_b32 s{d+2}, {nbytes}
    s_mov_b32 s{d+3}, 0x00020000
    """)

def wave_sum_to_sgpr(a, v, s):
    a(f"""
    s_nop 1
    v_add_f32_dpp v{v}, v{v}, v{v} row_shr:1 row_mask:0xf bank_mask:0xf bound_ctrl:0
    s_nop 1
    v_add_f32_dpp v{v}, v{v}, v{v} row_shr:2 row_mask:0xf bank_mask:0xf bound_ctrl:0
    s_nop 1
    v_add_f32_dpp v{v}, v{v}, v{v} row_shr:4 row_mask:0xf bank_mask:0xf bound_ctrl:0
    s_nop 1
    v_add_f32_dpp v{v}, v{v}, v{v} row_shr:8 row_mask:0xf bank_mask:0xf bound_ctrl:0
    s_nop 1
    v_add_f32_dpp v{v}, v{v}, v{v} row_bcast:15 row_mask:0xa bank_mask:0xf
    s_nop 1
    v_add_f32_dpp v{v}, v{v}, v{v} row_bcast:31 row_mask:0xc bank_mask:0xf
    s_nop 1
    v_readlane_b32 s{s}, v{v}, 63
    s_nop 3
    """)

def rne(a, d, s):
    a(f"""
    v_cvt_pk_bf16_f32 v{d}, v{s}, v{s}
    v_lshlrev_b32 v{d}, 16, v{d}
    """)

def layernorm9(a, f, t, sA):
    a(f"v_add_f32 v{t}, v{f}, v{f+1}")
    for i in range(2, 9):
        a(f"v_add_f32 v{t}, v{t}, v{f+i}")
    wave_sum_to_sgpr(a, t, sA)
    a(f"v_mov_b32 v{t+1}, {hex(f2u(1.0/576.0))}")
    a(f"v_mul_f32 v{t+1}, s{sA}, v{t+1}")
    a(f"v_sub_f32 v{t+2}, v{f}, v{t+1}")
    a(f"v_mul_f32 v{t}, v{t+2}, v{t+2}")
    for i in range(1, 9):
        a(f"v_sub_f32 v{t+2}, v{f+i}, v{t+1}")
        a(f"v_fmac_f32 v{t}, v{t+2}, v{t+2}")
    wave_sum_to_sgpr(a, t, sA)
    a(f"v_mov_b32 v{t+2}, {hex(f2u(1.0/576.0))}")
    a(f"v_mul_f32 v{t+2}, s{sA}, v{t+2}")
    rne(a, t+1, t+1)
    rne(a, t+2, t+2)
    a(f"v_add_f32 v{t+2}, {hex(f2u(1e-5))}, v{t+2}")
    rne(a, t+2, t+2)
    a(f"v_sqrt_f32 v{t+2}, v{t+2}")
    a("s_nop 0")
    rne(a, t+2, t+2)
    a(f"v_rcp_f32 v{t+3}, v{t+2}")
    a("s_nop 0")
    for i in range(9):
        a(f"v_sub_f32 v{f+i}, v{f+i}, v{t+1}")
        rne(a, f+i, f+i)
        a(f"v_mul_f32 v{t+4}, v{f+i}, v{t+3}")
        a(f"v_fma_f32 v{t+5}, -v{t+4}, v{t+2}, v{f+i}")
        a(f"v_fma_f32 v{t+4}, v{t+5}, v{t+3}, v{t+4}")
        rne(a, f+i, t+4)

S_K, S_V, S_WS, S_X, S_WQ, S_WO, S_W1, S_W2, S_B1, S_B2, S_OUT, S_DBG = 12, 16, 20, 24, 28, 32, 36, 40, 44, 48, 52, 56
def R(s): return f"s[{s}:{s+3}]"

stamp_idx = [0]
def stamp(a, name):
    if not STAMP:
        return
    i = stamp_idx[0]; stamp_idx[0] += 1
    a(f"""
    s_memrealtime s[90:91]
    s_waitcnt lgkmcnt(0)
    v_mov_b32 v250, s90
    v_mov_b32 v251, s91
    s_lshl_b32 s92, s2, 7
    s_add_u32 s92, s92, {WS_ST + 8*i}
    v_mov_b32 v252, 0
    s_mov_b64 s[94:95], exec
    s_mov_b64 exec, 1
    buffer_store_dwordx2 v[250:251], v252, {R(S_WS)}, s92 offen
    s_mov_b64 exec, s[94:95]
    """)

def poll_loop(a, lbl, loads, regs, tmp):
    a(f"s_mov_b32 s70, 0")
    a.label(lbl)
    for l in loads:
        a(l)
    a("s_waitcnt vmcnt(0)")
    a(f"v_add_u32 v{tmp}, 1, v{regs[0]}")
    for r in regs[1:]:
        a(f"v_add_u32 v{tmp+1}, 1, v{r}")
        a(f"v_min_u32 v{tmp}, v{tmp}, v{tmp+1}")
    a(f"""
    v_cmp_eq_u32 vcc, 0, v{tmp}
    s_add_u32 s70, s70, 1
    s_cbranch_vccz {lbl}_done
    s_cmp_lt_u32 s70, {SPIN_MAX}
    s_cbranch_scc1 {lbl}
    """)
    a.label(lbl + "_done")

def gen():
    a = A()
    name = NAME + "_kernel"
    a.raw(f".globl {name}")
    a.raw(".p2align 8")
    a.raw(f".type {name},@function")
    a.label(name)
    NT = " nt"
    a(f"""
    s_cmp_ge_u32 s2, 256
    s_cbranch_scc1 L_end
    s_load_dwordx4 s[4:7], s[0:1], 8
    s_load_dwordx2 s[8:9], s[0:1], 96
    s_load_dwordx2 s[60:61], s[0:1], 0
    s_load_dwordx4 s[64:67], s[0:1], 24
    s_load_dwordx4 s[72:75], s[0:1], 48
    s_load_dwordx4 s[76:79], s[0:1], 64
    s_load_dwordx4 s[80:83], s[0:1], 80
    v_lshrrev_b32 v1, 6, v0
    v_and_b32 v2, 63, v0
    s_nop 0
    v_readfirstlane_b32 s3, v1
    s_waitcnt lgkmcnt(0)
    """)
    a(f"""
    s_lshl_b32 s10, s2, 3
    s_add_u32 s10, s10, s3
    s_lshl_b32 s10, s10, 17
    s_add_u32 s4, s4, s10
    s_addc_u32 s5, s5, 0
    s_add_u32 s6, s6, s10
    s_addc_u32 s7, s7, 0
    """)
    srd(a, S_K, 4, 131072)
    srd(a, S_V, 6, 131072)
    srd(a, S_WS, 8, WS_BYTES)
    srd(a, S_X, 60, 1152)
    srd(a, S_WQ, 64, 576*4096*2)
    srd(a, S_WO, 66, 4096*576*2)
    srd(a, S_W1, 72, 576*4608*2)
    srd(a, S_B1, 74, 4608*2)
    srd(a, S_W2, 76, 4608*576*2)
    srd(a, S_B2, 78, 1152)
    srd(a, S_OUT, 80, 1152)
    srd(a, S_DBG, 82, 256)
    stamp(a, "start")
    a(f"""
    v_and_b32 v3, 3, v2
    v_lshlrev_b32 v3, 2, v3
    v_bfe_u32 v4, v2, 2, 2
    v_add_u32 v3, v3, v4
    v_lshlrev_b32 v3, 8, v3
    v_lshrrev_b32 v4, 4, v2
    v_lshlrev_b32 v5, 4, v4
    v_add_u32 v3, v3, v5
    v_lshlrev_b32 v6, 4, v2
    """)
    RING = 64
    Q = 192
    ACC = 224
    D0 = 240; D1 = 244
    def issue_loads(slot, soff):
        kb = RING + 32*slot
        vb = kb + 16
        for j in range(4):
            a(f"buffer_load_dwordx4 v[{kb+4*j}:{kb+4*j+3}], v3, {R(S_K)}, {soff} offen offset:{64*j}{NT}")
        for i in range(4):
            a(f"buffer_load_dwordx4 v[{vb+4*i}:{vb+4*i+3}], v6, {R(S_V)}, {soff} offen offset:{1024*i}{NT}")
    def prefetch3():
        a("s_mov_b32 s30x, 0".replace("s30x", "s62"))
        issue_loads(0, "s62")
        a("s_mov_b32 s62, 4096")
        issue_loads(1, "s62")
        a("s_mov_b32 s62, 8192")
        issue_loads(2, "s62")

    a(f"""
    s_cmp_lg_u32 s3, 7
    s_cbranch_scc1 L_nosent
    v_mov_b32 v8, -1
    v_mov_b32 v9, -1
    v_mov_b32 v10, -1
    v_mov_b32 v11, -1
    s_lshl_b32 s62, s2, 11
    s_add_u32 s62, s62, {WS_PO}
    buffer_store_dwordx4 v[8:11], v6, {R(S_WS)}, s62 offen sc1
    buffer_store_dwordx4 v[8:11], v6, {R(S_WS)}, s62 offen offset:1024 sc1
    s_mul_i32 s63, s2, 2304
    s_add_u32 s62, s63, {WS_PA}
    buffer_store_dwordx4 v[8:11], v6, {R(S_WS)}, s62 offen sc1
    buffer_store_dwordx4 v[8:11], v6, {R(S_WS)}, s62 offen offset:1024 sc1
    buffer_store_dwordx4 v[8:11], v6, {R(S_WS)}, s62 offen offset:2048 sc1
    s_add_u32 s62, s63, {WS_PM}
    buffer_store_dwordx4 v[8:11], v6, {R(S_WS)}, s62 offen sc1
    buffer_store_dwordx4 v[8:11], v6, {R(S_WS)}, s62 offen offset:1024 sc1
    buffer_store_dwordx4 v[8:11], v6, {R(S_WS)}, s62 offen offset:2048 sc1
    s_cmp_lg_u32 s2, 0
    s_cbranch_scc1 L_nosent
    s_mov_b32 s62, {WS_H}
    buffer_store_dwordx4 v[8:11], v6, {R(S_WS)}, s62 offen sc1
    buffer_store_dwordx4 v[8:11], v6, {R(S_WS)}, s62 offen offset:1024 sc1
    buffer_store_dwordx4 v[8:11], v6, {R(S_WS)}, s62 offen offset:2048 sc1
    """)
    a.label("L_nosent")
    F = 8
    a("v_lshlrev_b32 v7, 1, v2")
    for i in range(9):
        a(f"buffer_load_ushort v{F+i}, v7, {R(S_X)}, 0 offen offset:{128*i}")
    a(f"""
    v_lshrrev_b32 v17, 1, v2
    s_lshl_b32 s62, s3, 5
    v_add_u32 v17, s62, v17
    v_lshlrev_b32 v18, 13, v17
    v_and_b32 v19, 1, v2
    v_lshlrev_b32 v19, 4, v19
    s_lshl_b32 s62, s2, 5
    v_add3_u32 v18, v18, v19, s62
    """)
    WQ = 20
    for i in range(3):
        a(f"s_mov_b32 s62, {i*8*32*8192}")
        a(f"buffer_load_dwordx4 v[{WQ+4*i}:{WQ+4*i+3}], v18, {R(S_WQ)}, s62 offen")
    a(f"""
    s_mul_i32 s63, s2, 18432
    s_lshl_b32 s62, s3, 10
    s_add_u32 s63, s63, s62
    s_add_u32 m0, s62, {L_WO}
    s_nop 0
    buffer_load_dwordx4 v6, {R(S_WO)}, s63 offen lds
    s_add_u32 s63, s63, 8192
    s_add_u32 m0, s62, {L_WO + 8192}
    s_nop 0
    buffer_load_dwordx4 v6, {R(S_WO)}, s63 offen lds
    s_cmp_ge_u32 s3, 2
    s_cbranch_scc1 L_wo_done
    s_add_u32 s63, s63, 8192
    s_add_u32 m0, s62, {L_WO + 16384}
    s_nop 0
    buffer_load_dwordx4 v6, {R(S_WO)}, s63 offen lds
    """)
    a.label("L_wo_done")
    a(f"""
    s_cmp_ge_u32 s2, {N_D}
    s_cbranch_scc1 L_dma_done
    v_lshrrev_b32 v19, 2, v2
    s_movk_i32 s62, 9216
    v_mul_lo_u32 v19, v19, s62
    v_and_b32 v32, 3, v2
    v_lshlrev_b32 v32, 4, v32
    s_lshl_b32 s62, s2, 6
    v_add3_u32 v19, v19, v32, s62
    s_mul_i32 s63, s3, {16*9216}
    s_lshl_b32 s62, s3, 10
    s_mul_i32 s68, s2, 36864
    s_add_u32 s68, s68, s62
    """)
    for k in range(5):
        if k == 4:
            a("""
            s_cmp_ge_u32 s3, 4
            s_cbranch_scc1 L_dma_done
            """)
        a(f"""
        s_add_u32 m0, s62, {L_W1 + 8192*k}
        s_nop 0
        buffer_load_dwordx4 v19, {R(S_W1)}, s63 offen lds
        s_add_u32 m0, s62, {L_W2 + 8192*k}
        s_nop 0
        buffer_load_dwordx4 v6, {R(S_W2)}, s68 offen lds
        s_add_u32 s63, s63, {8*16*9216}
        s_add_u32 s68, s68, 8192
        """)
    a.label("L_dma_done")
    a(f"""
    s_cmp_eq_u32 s3, 7
    s_cbranch_scc1 L_w7_nopf
    """)
    prefetch3()
    a("s_waitcnt vmcnt(24)")
    a("s_branch L_pf_done")
    a.label("L_w7_nopf")
    a("s_waitcnt vmcnt(0)")
    a.label("L_pf_done")
    stamp(a, "xwq_loaded")
    for i in range(9):
        a(f"v_lshlrev_b32 v{F+i}, 16, v{F+i}")
    layernorm9(a, F, 32, 62)
    a(f"""
    v_lshlrev_b32 v7, 2, v2
    v_mov_b32 v32, 0
    """)
    for i in range(9):
        a(f"ds_write_b32 v7, v{F+i} offset:{L_XN + 256*i}")
    for i in range(9, 12):
        a(f"ds_write_b32 v7, v32 offset:{L_XN + 256*i}")
    a(f"""
    v_lshlrev_b32 v33, 2, v17
    s_waitcnt lgkmcnt(0)
    ds_read_b32 v34, v33 offset:{L_XN}
    ds_read_b32 v35, v33 offset:{L_XN + 1024}
    ds_read_b32 v36, v33 offset:{L_XN + 2048}
    """)
    QA = 40
    for c in range(8):
        a(f"v_mov_b32 v{QA+c}, 0")
    a("s_waitcnt lgkmcnt(0)")
    for i in range(3):
        for d in range(4):
            w = WQ + 4*i + d
            a(f"v_lshlrev_b32 v37, 16, v{w}")
            a(f"v_and_b32 v38, 0xffff0000, v{w}")
            a(f"v_fmac_f32 v{QA+2*d}, v{34+i}, v37")
            a(f"v_fmac_f32 v{QA+2*d+1}, v{34+i}, v38")
    a("s_nop 1")
    for rot in (2, 4, 8):
        for c in range(8):
            a(f"v_add_f32_dpp v{QA+c}, v{QA+c}, v{QA+c} row_ror:{rot} row_mask:0xf bank_mask:0xf")
    a(f"""
    v_lshrrev_b32 v33, 4, v2
    s_lshl_b32 s62, s3, 2
    v_add_u32 v33, s62, v33
    v_lshlrev_b32 v33, 6, v33
    v_and_b32 v37, 1, v2
    v_lshl_add_u32 v33, v37, 5, v33
    ds_write_b128 v33, v[{QA}:{QA+3}] offset:{L_QP}
    ds_write_b128 v33, v[{QA+4}:{QA+7}] offset:{L_QP+16}
    s_waitcnt lgkmcnt(0)
    s_barrier
    s_cmp_lg_u32 s3, 7
    s_cbranch_scc1 L_wait_q
    v_and_b32 v33, 15, v2
    v_lshlrev_b32 v37, 2, v33
    """)
    for p in range(32):
        a(f"ds_read_b32 v{160+p}, v37 offset:{L_QP + 64*p}")
    a("s_waitcnt lgkmcnt(0)")
    for p in range(1, 32):
        a(f"v_add_f32 v160, v160, v{160+p}")
    a(f"""
    v_cvt_pk_bf16_f32 v161, v160, v160
    v_lshlrev_b32 v37, 1, v33
    s_lshl_b32 s62, s2, 5
    buffer_store_short v161, v37, {R(S_WS)}, s62 offen offset:{WS_Q} sc1
    s_waitcnt vmcnt(0)
    v_mov_b32 v38, 1
    v_mov_b32 v39, 0
    s_mov_b64 exec, 1
    buffer_store_byte v38, v39, {R(S_DBG)}, s2 offen sc1
    s_mov_b64 exec, -1
    v_lshlrev_b32 v37, 2, v2
    s_mov_b32 s70, 0
    """)
    a.label("L_poll_flags")
    a(f"""
    buffer_load_dword v38, v37, {R(S_DBG)}, 0 offen sc1
    s_waitcnt vmcnt(0)
    v_cmp_ne_u32 vcc, 0x01010101, v38
    s_add_u32 s70, s70, 1
    s_cbranch_vccz L_flags_done
    s_sleep 2
    s_cmp_lt_u32 s70, {SPIN_MAX}
    s_cbranch_scc1 L_poll_flags
    """)
    a.label("L_flags_done")
    a(f"""
    v_and_b32 v37, 31, v2
    v_lshlrev_b32 v37, 4, v37
    s_lshr_b32 s62, s2, 4
    s_lshl_b32 s62, s62, 9
    buffer_load_dwordx4 v[160:163], v37, {R(S_WS)}, s62 offen offset:{WS_Q} sc1
    s_waitcnt vmcnt(0)
    ds_write_b128 v37, v[160:163] offset:{L_QL}
    """)
    prefetch3()
    a("s_waitcnt lgkmcnt(0)")
    a.label("L_wait_q")
    a("s_barrier")
    stamp(a, "q_ready")
    for hh in range(2):
        for j in range(4):
            r = Q + 16*hh + 4*j
            a(f"ds_read_b128 v[{r}:{r+3}], v5 offset:{L_QL + 256*hh + 64*j}")
    a("s_mov_b32 s62, 12288")
    a(f"""
    s_mov_b32 s64, {hex(f2u(SCALE))}
    s_mov_b32 s65, {hex(f2u(LOG2E))}
    s_mov_b32 s66, 0x05040100
    s_mov_b32 s67, 0x07060302
    s_mov_b32 s68, {hex(f2u(24.0))}
    s_mov_b32 s63, 0
    """)
    for i in range(16):
        a(f"v_mov_b32 v{ACC+i}, 0")
    NM = 8; L = 10
    a(f"""
    v_mov_b32 v{NM}, {hex(f2u(1e30))}
    v_mov_b32 v{NM+1}, {hex(f2u(1e30))}
    v_mov_b32 v{L}, 0
    v_mov_b32 v{L+1}, 0
    s_waitcnt lgkmcnt(0)
    """)
    S = 12; T = 20; RR = 28; PP = 32; TM = 36
    a.label("L_loop")
    for slot in range(4):
        kb = RING + 32*slot
        vb = kb + 16
        issue_loads((slot+3) % 4, "s62")
        a("s_add_u32 s62, s62, 4096")
        a("s_waitcnt vmcnt(28)")
        for j in range(4):
            c0 = "0" if j == 0 else f"v[{D0}:{D0+3}]"
            c1 = "0" if j == 0 else f"v[{D1}:{D1+3}]"
            a(f"v_mfma_f32_16x16x32_bf16 v[{D0}:{D0+3}], v[{kb+4*j}:{kb+4*j+3}], v[{Q+4*j}:{Q+4*j+3}], {c0}")
            a(f"v_mfma_f32_16x16x32_bf16 v[{D1}:{D1+3}], v[{kb+4*j}:{kb+4*j+3}], v[{Q+16+4*j}:{Q+16+4*j+3}], {c1}")
        a("s_nop 7")
        a("s_nop 1")
        for h, D in enumerate((D0, D1)):
            a(f"v_cvt_pk_bf16_f32 v{RR+2*h}, v{D}, v{D+1}")
            a(f"v_cvt_pk_bf16_f32 v{RR+2*h+1}, v{D+2}, v{D+3}")
        for k in range(4):
            a(f"v_lshlrev_b32 v{S+2*k}, 16, v{RR+k}")
            a(f"v_and_b32 v{S+2*k+1}, 0xffff0000, v{RR+k}")
        for k in range(8):
            a(f"v_mul_f32 v{S+k}, s64, v{S+k}")
        for k in range(4):
            a(f"v_cvt_pk_bf16_f32 v{RR+k}, v{S+2*k}, v{S+2*k+1}")
        for k in range(4):
            a(f"v_lshlrev_b32 v{S+2*k}, 16, v{RR+k}")
            a(f"v_and_b32 v{S+2*k+1}, 0xffff0000, v{RR+k}")
        a.label(f"L_retry{slot}")
        for k in range(8):
            a(f"v_fma_f32 v{T+k}, v{S+k}, s65, v{NM + k//4}")
        a(f"""
        v_max3_f32 v{TM}, v{T}, v{T+1}, v{T+2}
        v_max3_f32 v{TM+1}, v{T+3}, v{T+4}, v{T+5}
        v_max3_f32 v{TM}, v{TM}, v{T+6}, v{T+7}
        v_max_f32 v{TM}, v{TM}, v{TM+1}
        v_cmp_lt_f32 vcc, s68, v{TM}
        s_cbranch_vccnz L_rescale{slot}
        """)
        for k in range(8):
            a(f"v_exp_f32 v{T+k}, v{T+k}")
        a("s_nop 0")
        for h in range(2):
            a(f"v_cvt_pk_bf16_f32 v{PP+2*h}, v{T+4*h}, v{T+4*h+1}")
            a(f"v_cvt_pk_bf16_f32 v{PP+2*h+1}, v{T+4*h+2}, v{T+4*h+3}")
        for h in range(2):
            a(f"v_add_f32 v{TM}, v{T+4*h}, v{T+4*h+1}")
            a(f"v_add_f32 v{TM+1}, v{T+4*h+2}, v{T+4*h+3}")
            a(f"v_add_f32 v{TM}, v{TM}, v{TM+1}")
            a(f"v_add_f32 v{L+h}, v{L+h}, v{TM}")
        a("s_waitcnt vmcnt(24)")
        for pr in range(2):
            va = vb + 8*pr
            vbb = va + 4
            for c in range(4):
                lo = TM + 2 + 2*(c % 2)
                hi = lo + 1
                a(f"v_perm_b32 v{lo}, v{vbb+c}, v{va+c}, s66")
                a(f"v_perm_b32 v{hi}, v{vbb+c}, v{va+c}, s67")
                for h in range(2):
                    a(f"v_dot2_f32_bf16 v{ACC+8*h+2*c}, v{lo}, v{PP+2*h+pr}, v{ACC+8*h+2*c}")
                    a(f"v_dot2_f32_bf16 v{ACC+8*h+2*c+1}, v{hi}, v{PP+2*h+pr}, v{ACC+8*h+2*c+1}")
    a(f"""
    s_add_u32 s63, s63, 1
    s_cmp_lt_u32 s63, 8
    s_cbranch_scc1 L_loop
    s_branch L_tail
    """)
    for slot in range(4):
        a.label(f"L_rescale{slot}")
        for h in range(2):
            a(f"""
            v_max3_f32 v{TM}, v{S+4*h}, v{S+4*h+1}, v{S+4*h+2}
            v_max_f32 v{TM}, v{TM}, v{S+4*h+3}
            v_mul_f32 v{TM}, s65, v{TM}
            v_max_f32 v{TM}, v{TM}, -v{NM+h}
            v_sub_f32 v{TM+1}, 0, v{TM}
            v_sub_f32 v{TM+2}, v{TM+1}, v{NM+h}
            v_exp_f32 v{TM+2}, v{TM+2}
            v_mov_b32 v{NM+h}, v{TM+1}
            s_nop 0
            v_mul_f32 v{L+h}, v{L+h}, v{TM+2}
            """)
            for i in range(8):
                a(f"v_mul_f32 v{ACC+8*h+i}, v{ACC+8*h+i}, v{TM+2}")
        a(f"s_branch L_retry{slot}")
    a.label("L_tail")
    stamp(a, "loop_done")
    a(f"""
    v_xor_b32 v12, 16, v2
    v_lshlrev_b32 v12, 2, v12
    v_xor_b32 v13, 32, v2
    v_lshlrev_b32 v13, 2, v13
    """)
    for addr in (12, 13):
        a(f"""
        ds_bpermute_b32 v14, v{addr}, v{NM if addr == 12 else 16}
        ds_bpermute_b32 v15, v{addr}, v{NM+1 if addr == 12 else 17}
        s_waitcnt lgkmcnt(0)
        v_min_f32 v16, v14, v{NM if addr == 12 else 16}
        v_min_f32 v17, v15, v{NM+1 if addr == 12 else 17}
        """)
    a(f"""
    v_sub_f32 v18, v16, v{NM}
    v_sub_f32 v19, v17, v{NM+1}
    v_exp_f32 v18, v18
    v_exp_f32 v19, v19
    s_nop 0
    v_mul_f32 v{L}, v{L}, v18
    v_mul_f32 v{L+1}, v{L+1}, v19
    """)
    for i in range(8):
        a(f"v_mul_f32 v{ACC+i}, v{ACC+i}, v18")
        a(f"v_mul_f32 v{ACC+8+i}, v{ACC+8+i}, v19")
    vals = [L, L+1] + [ACC+i for i in range(16)]
    for addr in (12, 13):
        for k, r in enumerate(vals):
            a(f"ds_bpermute_b32 v{20+k}, v{addr}, v{r}")
        a("s_waitcnt lgkmcnt(0)")
        for k, r in enumerate(vals):
            a(f"v_add_f32 v{r}, v{r}, v{20+k}")
    a(f"""
    v_and_b32 v14, 15, v2
    v_lshlrev_b32 v14, 5, v14
    s_lshl_b32 s62, s3, 10
    v_add_u32 v14, s62, v14
    ds_write_b128 v14, v[{ACC}:{ACC+3}] offset:{L_CB}
    ds_write_b128 v14, v[{ACC+4}:{ACC+7}] offset:{L_CB+16}
    ds_write_b128 v14, v[{ACC+8}:{ACC+11}] offset:{L_CB+512}
    ds_write_b128 v14, v[{ACC+12}:{ACC+15}] offset:{L_CB+528}
    v_sub_f32 v20, 0, v16
    v_mov_b32 v21, v{L}
    v_sub_f32 v22, 0, v17
    v_mov_b32 v23, v{L+1}
    s_lshl_b32 s62, s3, 4
    v_mov_b32 v14, s62
    ds_write_b128 v14, v[20:23] offset:{L_CM}
    s_waitcnt vmcnt(0) lgkmcnt(0)
    s_barrier
    s_cmp_lg_u32 s3, 0
    s_cbranch_scc1 L_waitB
    """)
    a(f"""
    v_lshrrev_b32 v14, 5, v2
    v_lshlrev_b32 v15, 3, v14
    """)
    for p in range(8):
        a(f"ds_read_b64 v[{20+2*p}:{21+2*p}], v15 offset:{L_CM + 16*p}")
    for p in range(8):
        a(f"ds_read_b128 v[{40+4*p}:{43+4*p}], v6 offset:{L_CB + 1024*p}")
    a("s_waitcnt lgkmcnt(0)")
    a("v_mov_b32 v16, v20")
    for p in range(1, 8):
        a(f"v_max_f32 v16, v16, v{20+2*p}")
    for p in range(8):
        a(f"v_sub_f32 v{20+2*p}, v{20+2*p}, v16")
        a(f"v_exp_f32 v{20+2*p}, v{20+2*p}")
    a("s_nop 0")
    a("v_mul_f32 v17, v20, v21")
    for c in range(4):
        a(f"v_mul_f32 v{36+c}, v20, v{40+c}")
    for p in range(1, 8):
        a(f"v_fmac_f32 v17, v{20+2*p}, v{21+2*p}")
        for c in range(4):
            a(f"v_fmac_f32 v{36+c}, v{20+2*p}, v{40+4*p+c}")
    a(f"""
    s_lshl_b32 s62, s2, 11
    s_add_u32 s62, s62, {WS_PO}
    buffer_store_dwordx4 v[36:39], v6, {R(S_WS)}, s62 offen sc1
    v_and_b32 v18, 31, v2
    v_cmp_eq_u32 vcc, 0, v18
    s_and_saveexec_b64 s[84:85], vcc
    buffer_store_dwordx2 v[16:17], v15, {R(S_WS)}, s62 offen offset:1024 sc1
    s_mov_b64 exec, s[84:85]
    """)
    stamp(a, "A_published")
    a(f"""
    v_lshrrev_b32 v14, 2, v2
    v_lshlrev_b32 v14, 11, v14
    v_and_b32 v15, 3, v2
    v_lshl_add_u32 v15, v15, 4, v14
    s_lshr_b32 s62, s2, 4
    s_lshl_b32 s62, s62, 15
    s_add_u32 s62, s62, {WS_PO}
    s_bfe_u32 s63, s2, 0x10003
    s_lshl_b32 s69, s63, 3
    s_add_u32 s69, s69, s62
    s_lshl_b32 s63, s63, 9
    s_add_u32 s62, s62, s63
    s_and_b32 s63, s2, 7
    s_lshl_b32 s63, s63, 6
    s_add_u32 s62, s62, s63
    """)
    poll_loop(a, "L_pollB",
              [f"buffer_load_dwordx4 v[20:23], v15, {R(S_WS)}, s62 offen sc1",
               f"buffer_load_dwordx2 v[24:25], v14, {R(S_WS)}, s69 offen offset:1024 sc1"],
              [20, 21, 22, 23, 24, 25], 26)
    stamp(a, "B_gathered")
    a(f"""
    v_mov_b32 v26, v24
    s_nop 1
    v_max_f32_dpp v26, v26, v26 row_ror:4 row_mask:0xf bank_mask:0xf
    s_nop 1
    v_max_f32_dpp v26, v26, v26 row_ror:8 row_mask:0xf bank_mask:0xf
    s_nop 1
    ds_bpermute_b32 v27, v12, v26
    s_waitcnt lgkmcnt(0)
    v_max_f32 v26, v26, v27
    s_nop 0
    ds_bpermute_b32 v27, v13, v26
    s_waitcnt lgkmcnt(0)
    v_max_f32 v26, v26, v27
    v_sub_f32 v24, v24, v26
    v_exp_f32 v24, v24
    s_nop 0
    v_mul_f32 v25, v25, v24
    v_mul_f32 v20, v20, v24
    v_mul_f32 v21, v21, v24
    v_mul_f32 v22, v22, v24
    v_mul_f32 v23, v23, v24
    s_nop 1
    """)
    vals = [20, 21, 22, 23, 25]
    for rot in (4, 8):
        for r in vals:
            a(f"v_add_f32_dpp v{r}, v{r}, v{r} row_ror:{rot} row_mask:0xf bank_mask:0xf")
        a("s_nop 1")
    for addr in (12, 13):
        for k, r in enumerate(vals):
            a(f"ds_bpermute_b32 v{30+k}, v{addr}, v{r}")
        a("s_waitcnt lgkmcnt(0)")
        for k, r in enumerate(vals):
            a(f"v_add_f32 v{r}, v{r}, v{30+k}")
    a(f"""
    v_rcp_f32 v26, v25
    s_nop 0
    """)
    for r in (20, 21, 22, 23):
        a(f"""
        v_mul_f32 v27, v{r}, v26
        v_fma_f32 v28, -v27, v25, v{r}
        v_fma_f32 v{r}, v28, v26, v27
        """)
    a(f"""
    v_cvt_pk_bf16_f32 v20, v20, v21
    v_cvt_pk_bf16_f32 v21, v22, v23
    v_and_b32 v15, 3, v2
    v_lshlrev_b32 v15, 3, v15
    ds_write_b64 v15, v[20:21] offset:{L_O}
    s_waitcnt lgkmcnt(0)
    """)
    a.label("L_waitB")
    a("s_barrier")
    a(f"""
    s_cmp_ge_u32 s3, 5
    s_cbranch_scc1 L_B_done
    v_mov_b32 v14, 0
    v_lshlrev_b32 v15, 2, v0
    ds_read_b128 v[20:23], v14 offset:{L_O}
    ds_read_b128 v[24:27], v14 offset:{L_O+16}
    """)
    for r in range(16):
        a(f"ds_read_b32 v{30+r}, v15 offset:{L_WO + 1152*r}")
    a(f"""
    v_mov_b32 v16, 0
    v_mov_b32 v17, 0
    s_waitcnt lgkmcnt(0)
    """)
    for p in range(8):
        a(f"v_perm_b32 v18, v{31+2*p}, v{30+2*p}, s66")
        a(f"v_perm_b32 v19, v{31+2*p}, v{30+2*p}, s67")
        a(f"v_dot2_f32_bf16 v16, v18, v{20+p}, v16")
        a(f"v_dot2_f32_bf16 v17, v19, v{20+p}, v17")
    a(f"""
    s_mul_i32 s62, s2, 2304
    s_add_u32 s62, s62, {WS_PA}
    v_lshlrev_b32 v15, 3, v0
    v_cmp_gt_u32 vcc, 288, v0
    s_and_saveexec_b64 s[84:85], vcc
    s_nop 1
    buffer_store_dwordx2 v[16:17], v15, {R(S_WS)}, s62 offen sc1
    s_mov_b64 exec, s[84:85]
    """)
    a.label("L_B_done")
    stamp(a, "B_published")
    a(f"""
    s_cmp_lt_u32 s2, {N_D}
    s_cbranch_scc1 L_stageD
    s_cmp_ge_u32 s2, {C0 + N_C}
    s_cbranch_scc1 L_end
    """)
    a(f"""
    s_sub_u32 s71, s2, {C0}
    v_lshrrev_b32 v14, 2, v0
    s_movk_i32 s62, 2304
    v_mul_lo_u32 v14, v14, s62
    v_and_b32 v15, 3, v0
    v_lshl_add_u32 v14, v15, 4, v14
    s_lshl_b32 s62, s71, 6
    s_add_u32 s62, s62, {WS_PA}
    s_add_u32 s63, s62, {128*2304}
    """)
    a(f"""
    v_and_b32 v40, 15, v2
    v_lshlrev_b32 v41, 1, v40
    s_lshl_b32 s69, s71, 5
    buffer_load_ushort v42, v41, {R(S_X)}, s69 offen
    buffer_load_ushort v43, v41, {R(S_B2)}, s69 offen
    """)
    poll_loop(a, "L_pollC",
              [f"buffer_load_dwordx4 v[20:23], v14, {R(S_WS)}, s62 offen sc1",
               f"buffer_load_dwordx4 v[24:27], v14, {R(S_WS)}, s63 offen sc1"],
              list(range(20, 28)), 28)
    stamp(a, "C_gathered")
    def reduce16(lbl, nsrc):
        a("s_nop 1")
        for rot in (4, 8):
            for r in range(20, 24):
                a(f"v_add_f32_dpp v{r}, v{r}, v{r} row_ror:{rot} row_mask:0xf bank_mask:0xf")
            a("s_nop 1")
        a(f"""
        v_lshrrev_b32 v28, 4, v2
        s_lshl_b32 s62, s3, 2
        v_add_u32 v28, s62, v28
        v_lshlrev_b32 v28, 6, v28
        v_lshl_add_u32 v28, v15, 4, v28
        ds_write_b128 v28, v[20:23] offset:{L_RD}
        s_waitcnt lgkmcnt(0)
        s_barrier
        """)
    for c in range(4):
        a(f"v_add_f32 v{20+c}, v{20+c}, v{24+c}")
    reduce16("C", 2)
    a(f"""
    s_cmp_lg_u32 s3, 0
    s_cbranch_scc1 L_C_done
    v_lshlrev_b32 v28, 2, v40
    """)
    for p in range(32):
        a(f"ds_read_b32 v{160+p}, v28 offset:{L_RD + 64*p}")
    a("s_waitcnt lgkmcnt(0)")
    for p in range(1, 32):
        a(f"v_add_f32 v160, v160, v{160+p}")
    rne(a, 160, 160)
    a(f"""
    v_lshlrev_b32 v42, 16, v42
    v_add_f32 v44, v42, v160
    """)
    rne(a, 44, 44)
    a(f"""
    s_lshl_b32 s62, s71, 6
    s_add_u32 s62, s62, {WS_H}
    v_cmp_gt_u32 vcc, 16, v2
    s_and_saveexec_b64 s[84:85], vcc
    s_nop 1
    buffer_store_dword v44, v28, {R(S_WS)}, s62 offen sc1
    s_mov_b64 exec, s[84:85]
    """)
    a.label("L_C_done")
    stamp(a, "C_published")
    a(f"""
    s_barrier
    s_lshl_b32 s62, s71, 6
    s_add_u32 s62, s62, {WS_PM}
    s_add_u32 s63, s62, {128*2304}
    s_cmp_lg_u32 s3, 0
    s_cbranch_scc1 L_pollE1
    """)
    poll_loop(a, "L_pollE0",
              [f"buffer_load_dwordx4 v[20:23], v14, {R(S_WS)}, s62 offen sc1",
               f"buffer_load_dwordx4 v[24:27], v14, {R(S_WS)}, s63 offen sc1"],
              list(range(20, 28)), 28)
    for c in range(4):
        a(f"v_add_f32 v{20+c}, v{20+c}, v{24+c}")
    a("s_branch L_pollE1_done")
    poll_loop(a, "L_pollE1",
              [f"buffer_load_dwordx4 v[20:23], v14, {R(S_WS)}, s62 offen sc1"],
              list(range(20, 24)), 28)
    stamp(a, "E_gathered")
    reduce16("E", 1)
    a(f"""
    s_cmp_lg_u32 s3, 0
    s_cbranch_scc1 L_end
    v_lshlrev_b32 v28, 2, v40
    """)
    for p in range(32):
        a(f"ds_read_b32 v{160+p}, v28 offset:{L_RD + 64*p}")
    a("s_waitcnt lgkmcnt(0)")
    for p in range(1, 32):
        a(f"v_add_f32 v160, v160, v{160+p}")
    rne(a, 160, 160)
    a(f"""
    v_lshlrev_b32 v43, 16, v43
    v_add_f32 v160, v160, v43
    """)
    rne(a, 160, 160)
    a(f"""
    v_add_f32 v160, v160, v44
    v_cvt_pk_bf16_f32 v160, v160, v160
    v_cmp_gt_u32 vcc, 16, v2
    s_and_saveexec_b64 s[84:85], vcc
    s_nop 1
    buffer_store_short v160, v41, {R(S_OUT)}, s69 offen
    s_mov_b64 exec, s[84:85]
    """)
    stamp(a, "E_done")
    a("s_branch L_end")
    a.label("L_stageD")
    a(f"""
    v_and_b32 v40, 31, v2
    v_lshlrev_b32 v41, 1, v40
    s_lshl_b32 s69, s2, 6
    buffer_load_ushort v42, v41, {R(S_B1)}, s69 offen
    s_cmp_lg_u32 s3, 0
    s_cbranch_scc1 L_waitD
    v_lshlrev_b32 v14, 2, v2
    s_mov_b32 s62, {WS_H}
    """)
    poll_loop(a, "L_pollD",
              [f"buffer_load_dword v{20+i}, v14, {R(S_WS)}, s62 offen offset:{256*i} sc1" for i in range(9)],
              list(range(20, 29)), 30)
    stamp(a, "D_gathered")
    layernorm9(a, 20, 30, 62)
    for i in range(9):
        a(f"ds_write_b32 v14, v{20+i} offset:{L_HN + 256*i}")
    a("s_waitcnt lgkmcnt(0)")
    a.label("L_waitD")
    a("s_barrier")
    a(f"""
    v_lshrrev_b32 v14, 3, v2
    s_mul_i32 s62, s3, 72
    v_add_u32 v14, s62, v14
    v_lshlrev_b32 v15, 2, v14
    v_lshlrev_b32 v14, 6, v14
    v_and_b32 v16, 7, v2
    v_lshl_add_u32 v14, v16, 3, v14
    """)
    for i in range(9):
        a(f"ds_read_b64 v[{20+2*i}:{21+2*i}], v14 offset:{L_W1 + 512*i}")
    for i in range(9):
        a(f"ds_read_b32 v{44+i}, v15 offset:{L_HN + 32*i}")
    for c in range(4):
        a(f"v_mov_b32 v{54+c}, 0")
    a("s_waitcnt lgkmcnt(0)")
    for i in range(9):
        for d in range(2):
            w = 20 + 2*i + d
            a(f"v_lshlrev_b32 v58, 16, v{w}")
            a(f"v_and_b32 v59, 0xffff0000, v{w}")
            a(f"v_fmac_f32 v{54+2*d}, v{44+i}, v58")
            a(f"v_fmac_f32 v{54+2*d+1}, v{44+i}, v59")
    a(f"""
    v_lshlrev_b32 v14, 4, v0
    ds_write_b128 v14, v[54:57] offset:{L_RD}
    s_waitcnt lgkmcnt(0)
    s_barrier
    s_cmp_ge_u32 s3, 5
    s_cbranch_scc1 L_end
    """)
    a(f"""
    v_lshrrev_b32 v14, 5, v2
    v_lshlrev_b32 v14, 12, v14
    v_lshl_add_u32 v14, v40, 2, v14
    """)
    for p in range(32):
        a(f"ds_read_b32 v{160+p}, v14 offset:{L_RD + 128*p}")
    a("v_lshlrev_b32 v15, 2, v0")
    a(f"v_add_u32 v15, {L_W2}, v15")
    for r in range(32):
        a(f"ds_read_b32 v{192+r}, v15 offset:{1152*r}")
    a("s_waitcnt lgkmcnt(32)") if False else a("s_waitcnt lgkmcnt(0)")
    for p in range(1, 32):
        a(f"v_add_f32 v160, v160, v{160+p}")
    a(f"""
    s_nop 0
    ds_bpermute_b32 v161, v13, v160
    s_waitcnt vmcnt(0) lgkmcnt(0)
    v_add_f32 v160, v160, v161
    """)
    rne(a, 160, 160)
    a(f"""
    v_lshlrev_b32 v42, 16, v42
    v_add_f32 v160, v160, v42
    """)
    rne(a, 160, 160)
    a(f"""
    v_max_f32 v160, 0, v160
    v_mul_f32 v160, v160, v160
    """)
    rne(a, 160, 160)
    a(f"""
    s_nop 1
    v_mov_b32_dpp v161, v160 quad_perm:[1,0,3,2] row_mask:0xf bank_mask:0xf
    s_nop 1
    v_cvt_pk_bf16_f32 v162, v160, v161
    s_nop 1
    """)
    for k in range(16):
        a(f"v_readlane_b32 s{72+k}, v162, {2*k}")
    a(f"""
    v_mov_b32 v16, 0
    v_mov_b32 v17, 0
    s_nop 3
    """)
    for p in range(16):
        a(f"v_perm_b32 v18, v{193+2*p}, v{192+2*p}, s66")
        a(f"v_perm_b32 v19, v{193+2*p}, v{192+2*p}, s67")
        a(f"v_dot2_f32_bf16 v16, v18, s{72+p}, v16")
        a(f"v_dot2_f32_bf16 v17, v19, s{72+p}, v17")
    a(f"""
    s_mul_i32 s62, s2, 2304
    s_add_u32 s62, s62, {WS_PM}
    v_lshlrev_b32 v15, 3, v0
    v_cmp_gt_u32 vcc, 288, v0
    s_and_saveexec_b64 s[84:85], vcc
    s_nop 1
    buffer_store_dwordx2 v[16:17], v15, {R(S_WS)}, s62 offen sc1
    s_mov_b64 exec, s[84:85]
    """)
    stamp(a, "D_published")
    a.label("L_end")
    a("s_endpgm")
    return a, name

def main():
    a, name = gen()
    hdr = open(f"cdna_kernels/{NAME}.s.ref").read().split("; Override launch")[0]
    out = hdr
    out += f"; @launch grid=(256,1,1) block=(512,1,1) lds={L_END}\n"
    out += '.amdgcn_target "amdgcn-amd-amdhsa--gfx950"\n.text\n'
    out += a.text()
    out += '.section .rodata,"a"\n.p2align 6\n'
    out += f""".amdhsa_kernel {name}
  .amdhsa_next_free_vgpr 256
  .amdhsa_next_free_sgpr 102
  .amdhsa_accum_offset 256
  .amdhsa_group_segment_fixed_size 0
  .amdhsa_kernarg_size 104
  .amdhsa_user_sgpr_count 2
  .amdhsa_user_sgpr_kernarg_segment_ptr 1
  .amdhsa_system_sgpr_workgroup_id_x 1
.end_amdhsa_kernel
"""
    args = [x for x in sys.argv[1:] if not x.startswith("--")]
    dst = args[0] if args else f"cdna_kernels/{NAME}.s"
    open(dst, "w").write(out)

main()
```

```python
import struct, sys

NAME = "sequential_preLN__gqa_block_cached__dense_activation_squared_relu__decode"
STAMP = "--stamp" in sys.argv
PACE = None
PSLEEP = 1
for _a in sys.argv:
    if _a.startswith("--psleep="):
        PSLEEP = int(_a.split("=")[1])
HOLD = 0
for _a in sys.argv:
    if _a.startswith("--hold="):
        HOLD = int(_a.split("=")[1])
for _a in sys.argv:
    if _a.startswith("--pace="):
        PACE = int(_a.split("=")[1])
DNT = " nt" if "--dnt" in sys.argv else ""

def f2u(f):
    return struct.unpack("<I", struct.pack("<f", f))[0]

class A:
    def __init__(self):
        self.l = []
    def __call__(self, s):
        for line in s.strip("\n").split("\n"):
            if line.strip():
                self.l.append("    " + line.strip())
    def label(self, s):
        self.l.append(s + ":")
    def raw(self, s):
        self.l.append(s)
    def text(self):
        return "\n".join(self.l) + "\n"

WS_Q = 0
WS_PO = 0x20000
WS_PA = 0x100000
WS_H = 0x1A0000
WS_PM = 0x1B0000
WS_ST = 0x300000
WS_BYTES = 0x400000

L_XN = 0
L_QP = L_XN + 3072
L_QL = L_QP + 2048
L_QF = L_QL + 512
L_CB = L_QL + 576
L_CM = L_CB + 8192
L_O = L_CM + 128
L_RD = L_O + 128
L_HN = L_RD + 8192
L_WO = L_HN + 2304
L_W1 = L_WO + 18432
L_W2 = L_W1 + 36864
L_END = L_W2 + 36864 + 256

LOG2E = 1.4426950408889634
SCALE = 128 ** -0.5
N_D = 144
C0 = 144
N_C = 36
SPIN_MAX = 20000

def srd(a, d, b, nbytes):
    a(f"""
    s_mov_b32 s{d}, s{b}
    s_and_b32 s{d+1}, s{b+1}, 0xffff
    s_mov_b32 s{d+2}, {nbytes}
    s_mov_b32 s{d+3}, 0x00020000
    """)

def wave_sum_to_sgpr(a, v, s):
    a(f"""
    s_nop 1
    v_add_f32_dpp v{v}, v{v}, v{v} row_shr:1 row_mask:0xf bank_mask:0xf bound_ctrl:0
    s_nop 1
    v_add_f32_dpp v{v}, v{v}, v{v} row_shr:2 row_mask:0xf bank_mask:0xf bound_ctrl:0
    s_nop 1
    v_add_f32_dpp v{v}, v{v}, v{v} row_shr:4 row_mask:0xf bank_mask:0xf bound_ctrl:0
    s_nop 1
    v_add_f32_dpp v{v}, v{v}, v{v} row_shr:8 row_mask:0xf bank_mask:0xf bound_ctrl:0
    s_nop 1
    v_add_f32_dpp v{v}, v{v}, v{v} row_bcast:15 row_mask:0xa bank_mask:0xf
    s_nop 1
    v_add_f32_dpp v{v}, v{v}, v{v} row_bcast:31 row_mask:0xc bank_mask:0xf
    s_nop 1
    v_readlane_b32 s{s}, v{v}, 63
    s_nop 3
    """)

def rne(a, d, s):
    a(f"""
    v_cvt_pk_bf16_f32 v{d}, v{s}, v{s}
    v_lshlrev_b32 v{d}, 16, v{d}
    """)

def layernorm9(a, f, t, sA):
    a(f"v_add_f32 v{t}, v{f}, v{f+1}")
    for i in range(2, 9):
        a(f"v_add_f32 v{t}, v{t}, v{f+i}")
    wave_sum_to_sgpr(a, t, sA)
    a(f"v_mov_b32 v{t+1}, {hex(f2u(1.0/576.0))}")
    a(f"v_mul_f32 v{t+1}, s{sA}, v{t+1}")
    a(f"v_sub_f32 v{t+2}, v{f}, v{t+1}")
    a(f"v_mul_f32 v{t}, v{t+2}, v{t+2}")
    for i in range(1, 9):
        a(f"v_sub_f32 v{t+2}, v{f+i}, v{t+1}")
        a(f"v_fmac_f32 v{t}, v{t+2}, v{t+2}")
    wave_sum_to_sgpr(a, t, sA)
    a(f"v_mov_b32 v{t+2}, {hex(f2u(1.0/576.0))}")
    a(f"v_mul_f32 v{t+2}, s{sA}, v{t+2}")
    rne(a, t+1, t+1)
    rne(a, t+2, t+2)
    a(f"v_add_f32 v{t+2}, {hex(f2u(1e-5))}, v{t+2}")
    rne(a, t+2, t+2)
    a(f"v_sqrt_f32 v{t+2}, v{t+2}")
    a("s_nop 0")
    rne(a, t+2, t+2)
    a(f"v_rcp_f32 v{t+3}, v{t+2}")
    a("s_nop 0")
    for i in range(9):
        a(f"v_sub_f32 v{f+i}, v{f+i}, v{t+1}")
        rne(a, f+i, f+i)
        a(f"v_mul_f32 v{t+4}, v{f+i}, v{t+3}")
        a(f"v_fma_f32 v{t+5}, -v{t+4}, v{t+2}, v{f+i}")
        a(f"v_fma_f32 v{t+4}, v{t+5}, v{t+3}, v{t+4}")
        rne(a, f+i, t+4)

S_K, S_V, S_WS, S_X, S_WQ, S_WO, S_W1, S_W2, S_B1, S_B2, S_OUT, S_DBG = 12, 16, 20, 24, 28, 32, 36, 40, 44, 48, 52, 56
def R(s): return f"s[{s}:{s+3}]"

stamp_idx = [0]
def stamp(a, name):
    if not STAMP:
        return
    i = stamp_idx[0]; stamp_idx[0] += 1
    print("stamp", i, name)
    a(f"""
    s_memrealtime s[90:91]
    s_waitcnt lgkmcnt(0)
    v_mov_b32 v250, s90
    v_mov_b32 v251, s91
    s_lshl_b32 s92, s2, 3
    s_add_u32 s92, s92, s3
    s_lshl_b32 s92, s92, 8
    s_add_u32 s92, s92, {WS_ST + 8*i}
    v_mov_b32 v252, 0
    s_mov_b64 s[94:95], exec
    s_mov_b64 exec, 1
    buffer_store_dwordx2 v[250:251], v252, {R(S_WS)}, s92 offen
    s_mov_b64 exec, s[94:95]
    """)

def poll_loop(a, lbl, loads, regs, tmp):
    a(f"s_mov_b32 s70, 0")
    a.label(lbl)
    for l in loads:
        a(l)
    a("s_waitcnt vmcnt(0)")
    a(f"v_add_u32 v{tmp}, 1, v{regs[0]}")
    for r in regs[1:]:
        a(f"v_add_u32 v{tmp+1}, 1, v{r}")
        a(f"v_min_u32 v{tmp}, v{tmp}, v{tmp+1}")
    a(f"""
    v_cmp_eq_u32 vcc, 0, v{tmp}
    s_add_u32 s70, s70, 1
    s_cbranch_vccz {lbl}_done
    s_cmp_lt_u32 s70, {SPIN_MAX}
    s_cbranch_scc1 {lbl}
    """)
    a.label(lbl + "_done")

def gen():
    a = A()
    name = NAME + "_kernel"
    a.raw(f".globl {name}")
    a.raw(".p2align 8")
    a.raw(f".type {name},@function")
    a.label(name)
    NT = " nt"
    a(f"""
    s_cmp_ge_u32 s2, 256
    s_cbranch_scc1 L_end
    s_load_dwordx4 s[4:7], s[0:1], 8
    s_load_dwordx2 s[8:9], s[0:1], 96
    s_load_dwordx2 s[60:61], s[0:1], 0
    s_load_dwordx4 s[64:67], s[0:1], 24
    s_load_dwordx4 s[72:75], s[0:1], 48
    s_load_dwordx4 s[76:79], s[0:1], 64
    s_load_dwordx4 s[80:83], s[0:1], 80
    v_lshrrev_b32 v1, 6, v0
    v_and_b32 v2, 63, v0
    s_nop 0
    v_readfirstlane_b32 s3, v1
    s_waitcnt lgkmcnt(0)
    """)
    a(f"""
    s_lshl_b32 s10, s2, 3
    s_add_u32 s10, s10, s3
    s_lshl_b32 s10, s10, 17
    s_add_u32 s4, s4, s10
    s_addc_u32 s5, s5, 0
    s_add_u32 s6, s6, s10
    s_addc_u32 s7, s7, 0
    """)
    srd(a, S_K, 4, 131072)
    srd(a, S_V, 6, 131072)
    srd(a, S_WS, 8, WS_BYTES)
    srd(a, S_X, 60, 1152)
    srd(a, S_WQ, 64, 576*4096*2)
    srd(a, S_WO, 66, 4096*576*2)
    srd(a, S_W1, 72, 576*4608*2)
    srd(a, S_B1, 74, 4608*2)
    srd(a, S_W2, 76, 4608*576*2)
    srd(a, S_B2, 78, 1152)
    srd(a, S_OUT, 80, 1152)
    srd(a, S_DBG, 82, 256)
    stamp(a, "start")
    a(f"""
    v_and_b32 v3, 3, v2
    v_lshlrev_b32 v3, 2, v3
    v_bfe_u32 v4, v2, 2, 2
    v_add_u32 v3, v3, v4
    v_lshlrev_b32 v3, 8, v3
    v_lshrrev_b32 v4, 4, v2
    v_lshlrev_b32 v5, 4, v4
    v_add_u32 v3, v3, v5
    v_lshlrev_b32 v6, 4, v2
    """)
    RING = 64
    Q = 192
    ACC = 224
    D0 = 240; D1 = 244
    def issue_loads(slot, soff):
        kb = RING + 32*slot
        vb = kb + 16
        for j in range(4):
            a(f"buffer_load_dwordx4 v[{kb+4*j}:{kb+4*j+3}], v3, {R(S_K)}, {soff} offen offset:{64*j}{NT}")
        for i in range(4):
            a(f"buffer_load_dwordx4 v[{vb+4*i}:{vb+4*i+3}], v6, {R(S_V)}, {soff} offen offset:{1024*i}{NT}")
    def prefetch3():
        a("s_mov_b32 s30x, 0".replace("s30x", "s62"))
        issue_loads(0, "s62")
        a("s_mov_b32 s62, 4096")
        issue_loads(1, "s62")
        a("s_mov_b32 s62, 8192")
        issue_loads(2, "s62")

    def prefetch4(pace):
        for t in range(4):
            a(f"s_mov_b32 s62, {4096*t}")
            kb = RING + 32*t
            vb = kb + 16
            if pace is not None:
                a(f"s_waitcnt vmcnt({pace})")
            for j in range(4):
                a(f"buffer_load_dwordx4 v[{kb+4*j}:{kb+4*j+3}], v3, {R(S_K)}, s62 offen offset:{64*j}{NT}")
            if pace is not None:
                a(f"s_waitcnt vmcnt({pace})")
            for i in range(4):
                a(f"buffer_load_dwordx4 v[{vb+4*i}:{vb+4*i+3}], v6, {R(S_V)}, s62 offen offset:{1024*i}{NT}")
    a(f"""
    s_cmp_eq_u32 s3, 0
    s_cbranch_scc1 L_crit
    """)
    if HOLD:
        a(f"""
        buffer_load_dword v40, v6, {R(S_K)}, 0 offen
        buffer_load_dword v41, v6, {R(S_V)}, 0 offen
        """)
    a(f"""
    s_barrier
    s_sub_u32 s62, s3, 1
    s_mul_i32 s68, s2, 18432
    """)
    def dma():
        a.label("L_dma_wo")
        a(f"""
        s_lshl_b32 s69, s62, 10
        s_add_u32 s63, s68, s69
        s_add_u32 m0, s69, {L_WO}
        s_add_u32 s62, s62, 7
        buffer_load_dwordx4 v6, {R(S_WO)}, s63 offen lds{DNT}
        s_cmp_lt_u32 s62, 18
        s_cbranch_scc1 L_dma_wo
        s_cmp_ge_u32 s2, {N_D}
        s_cbranch_scc1 L_dma_done
        v_lshrrev_b32 v19, 2, v2
        s_movk_i32 s62, 9216
        v_mul_lo_u32 v19, v19, s62
        v_and_b32 v32, 3, v2
        v_lshlrev_b32 v32, 4, v32
        s_lshl_b32 s62, s2, 6
        v_add3_u32 v19, v19, v32, s62
        s_sub_u32 s62, s3, 1
        s_mul_i32 s68, s2, 36864
        """)
        a.label("L_dma_w")
        if PACE is not None:
            a(f"s_waitcnt vmcnt({PACE+2})")
        a(f"""
        s_lshl_b32 s69, s62, 10
        s_mul_i32 s63, s62, {16*9216}
        s_add_u32 m0, s69, {L_W1}
        s_nop 0
        buffer_load_dwordx4 v19, {R(S_W1)}, s63 offen lds{DNT}
        s_add_u32 s63, s68, s69
        s_add_u32 m0, s69, {L_W2}
        s_add_u32 s62, s62, 7
        buffer_load_dwordx4 v6, {R(S_W2)}, s63 offen lds{DNT}
        s_cmp_lt_u32 s62, 36
        s_cbranch_scc1 L_dma_w
        """)
        a.label("L_dma_done")
    dma()
    prefetch4(PACE)
    stamp(a, "bulk_issued")
    a(f"""
    v_mov_b32 v40, 0
    s_mov_b32 s70, 0
    """)
    a.label("L_qwait")
    a(f"""
    ds_read_b32 v41, v40 offset:{L_QF}
    s_waitcnt lgkmcnt(0)
    v_cmp_ne_u32 vcc, 0, v41
    s_add_u32 s70, s70, 1
    s_cbranch_vccnz L_q_ok
    s_sleep 1
    s_cmp_lt_u32 s70, {SPIN_MAX*40}
    s_cbranch_scc1 L_qwait
    s_branch L_q_ok
    """)
    a.label("L_crit")
    F = 8
    a(f"""
    s_setprio 3
    v_mov_b32 v63, 0
    ds_write_b32 v63, v63 offset:{L_QF}
    s_cmp_lg_u32 s2, 0
    s_cbranch_scc1 L_nononce
    s_memrealtime s[90:91]
    s_waitcnt lgkmcnt(0)
    s_or_b32 s90, s90, 1
    v_mov_b32 v38, s90
    s_mov_b64 exec, 1
    buffer_store_dword v38, v63, {R(S_DBG)}, 0 offen offset:128 sc1
    s_mov_b64 exec, -1
    """)
    a.label("L_nononce")
    a("v_lshlrev_b32 v7, 1, v2")
    for i in range(9):
        a(f"buffer_load_ushort v{F+i}, v7, {R(S_X)}, 0 offen offset:{128*i}")
    a(f"""
    v_lshrrev_b32 v18, 3, v2
    v_lshlrev_b32 v17, 13, v18
    v_and_b32 v19, 7, v2
    v_lshl_add_u32 v17, v19, 4, v17
    s_bfe_u32 s68, s2, 0x20002
    s_mul_i32 s62, s68, {144*8192}
    s_lshr_b32 s63, s2, 4
    s_lshl_b32 s63, s63, 9
    s_add_u32 s62, s62, s63
    s_and_b32 s63, s2, 3
    s_lshl_b32 s63, s63, 7
    s_add_u32 s62, s62, s63
    """)
    WQ = 64
    for i in range(18):
        a(f"buffer_load_dwordx4 v[{WQ+4*i}:{WQ+4*i+3}], v17, {R(S_WQ)}, s62 offen")
        if i < 17:
            a("s_add_u32 s62, s62, 65536")
    if HOLD == 0:
        a("s_waitcnt lgkmcnt(0)")
        a("s_barrier")
    a(f"""
    v_mov_b32 v20, -1
    v_mov_b32 v21, -1
    v_mov_b32 v22, -1
    v_mov_b32 v23, -1
    s_lshl_b32 s62, s2, 11
    s_add_u32 s62, s62, {WS_PO}
    buffer_store_dwordx4 v[20:23], v6, {R(S_WS)}, s62 offen sc1
    buffer_store_dwordx4 v[20:23], v6, {R(S_WS)}, s62 offen offset:1024 sc1
    s_mul_i32 s63, s2, 2304
    s_add_u32 s62, s63, {WS_PA}
    buffer_store_dwordx4 v[20:23], v6, {R(S_WS)}, s62 offen sc1
    buffer_store_dwordx4 v[20:23], v6, {R(S_WS)}, s62 offen offset:1024 sc1
    buffer_store_dwordx4 v[20:23], v6, {R(S_WS)}, s62 offen offset:2048 sc1
    s_add_u32 s62, s63, {WS_PM}
    buffer_store_dwordx4 v[20:23], v6, {R(S_WS)}, s62 offen sc1
    buffer_store_dwordx4 v[20:23], v6, {R(S_WS)}, s62 offen offset:1024 sc1
    buffer_store_dwordx4 v[20:23], v6, {R(S_WS)}, s62 offen offset:2048 sc1
    s_cmp_lt_u32 s2, {N_C}
    s_cselect_b32 s63, 4, 0
    v_mov_b32 v24, 0x40000000
    v_cmp_gt_u32 vcc, s63, v2
    v_cndmask_b32 v24, v24, v6, vcc
    s_lshl_b32 s62, s2, 6
    s_add_u32 s62, s62, {WS_H}
    buffer_store_dwordx4 v[20:23], v24, {R(S_WS)}, s62 offen sc1
    s_waitcnt vmcnt(27)
    """)
    if HOLD == 1:
        a("s_waitcnt lgkmcnt(0)")
        a("s_barrier")
    for i in range(9):
        a(f"v_lshlrev_b32 v{F+i}, 16, v{F+i}")
    layernorm9(a, F, 32, 62)
    a(f"""
    v_lshlrev_b32 v7, 2, v2
    """)
    for i in range(9):
        a(f"ds_write_b32 v7, v{F+i} offset:{L_XN + 256*i}")
    a(f"""
    s_mul_i32 s62, s68, 144
    v_add_u32 v33, s62, v18
    v_lshlrev_b32 v33, 2, v33
    s_waitcnt lgkmcnt(0)
    """)
    XR = 32
    for i in range(18):
        a(f"ds_read_b32 v{XR+2+i}, v33 offset:{L_XN + 32*i}")
    QA = 52
    for c in range(8):
        a(f"v_mov_b32 v{QA+c}, 0")
    a(f"buffer_load_dword v62, v63, {R(S_DBG)}, 0 offen offset:128 sc1")
    a("s_waitcnt lgkmcnt(0)")
    stamp(a, "x_done")
    for i in range(18):
        a(f"s_waitcnt vmcnt({9 + 17 - i + 1 + (1 if STAMP else 0)})")
        for d in range(4):
            w = WQ + 4*i + d
            a(f"v_lshlrev_b32 v60, 16, v{w}")
            a(f"v_and_b32 v61, 0xffff0000, v{w}")
            a(f"v_fmac_f32 v{QA+2*d}, v{XR+2+i}, v60")
            a(f"v_fmac_f32 v{QA+2*d+1}, v{XR+2+i}, v61")
    if HOLD == 2:
        a("s_barrier")
    stamp(a, "xwq_loaded")
    a("s_nop 1")
    for c in range(8):
        a(f"v_add_f32_dpp v{QA+c}, v{QA+c}, v{QA+c} row_ror:8 row_mask:0xf bank_mask:0xf")
    for sw in ("v_permlane16_swap_b32", "v_permlane32_swap_b32"):
        for c in range(8):
            a(f"v_mov_b32 v{32+c}, v{QA+c}")
        a("s_nop 1")
        for c in range(8):
            a(f"{sw} v{QA+c}, v{32+c}")
        a("s_nop 1")
        for c in range(8):
            a(f"v_add_f32 v{QA+c}, v{QA+c}, v{32+c}")
    a(f"""
    s_mov_b32 s70, 0
    s_waitcnt vmcnt(0)
    """)
    a.label("L_nonce")
    a(f"""
    v_cmp_eq_u32 vcc, 0, v62
    s_add_u32 s70, s70, 1
    s_cbranch_vccz L_nonce_ok
    s_cmp_ge_u32 s70, {SPIN_MAX}
    s_cbranch_scc1 L_nonce_ok
    buffer_load_dword v62, v63, {R(S_DBG)}, 0 offen offset:128 sc1
    s_waitcnt vmcnt(0)
    s_branch L_nonce
    """)
    a.label("L_nonce_ok")
    for c in range(8):
        a(f"v_mov_b32 v{32+2*c}, v{QA+c}")
        a(f"v_mov_b32 v{33+2*c}, v62")
    a(f"""
    v_lshlrev_b32 v60, 6, v2
    s_lshl_b32 s62, s2, 9
    s_mov_b64 exec, 0xff
    """)
    for k in range(4):
        a(f"buffer_store_dwordx4 v[{32+4*k}:{35+4*k}], v60, {R(S_WS)}, s62 offen offset:{WS_Q + 16*k} sc1")
    a(f"""
    s_mov_b64 exec, -1
    s_lshr_b32 s62, s2, 4
    s_lshl_b32 s63, s62, 2
    s_lshl_b32 s62, s62, 13
    s_add_u32 s69, s62, 4096
    s_mov_b32 s70, 0
    """)
    stamp(a, "q_published")
    a.label("L_pollQ")
    for rb in range(4):
        for hf in range(2):
            r = 64 + 8*rb + 4*hf
            so = "s62" if rb < 2 else "s69"
            a(f"buffer_load_dwordx4 v[{r}:{r+3}], v6, {R(S_WS)}, {so} offen offset:{WS_Q + 2048*(rb%2) + 1024*hf} sc1")
    a("s_waitcnt vmcnt(0)")
    a("v_xor_b32 v60, v65, v62")
    for k in range(1, 16):
        a(f"v_xor_b32 v61, v{65+2*k}, v62")
        a(f"v_or_b32 v60, v60, v61")
    a(f"""
    v_cmp_ne_u32 vcc, 0, v60
    s_add_u32 s70, s70, 1
    s_cbranch_vccz L_pollQ_done
    s_cmp_lt_u32 s70, {SPIN_MAX}
    s_cbranch_scc1 L_pollQ
    """)
    a.label("L_pollQ_done")
    for hf in range(2):
        for e in range(2):
            r = 64 + 4*hf + 2*e
            a(f"v_add_f32 v{r}, v{r}, v{r+8}")
            a(f"v_add_f32 v{r+16}, v{r+16}, v{r+24}")
            a(f"v_add_f32 v{r}, v{r}, v{r+16}")
    a(f"""
    v_cvt_pk_bf16_f32 v40, v64, v66
    v_cvt_pk_bf16_f32 v41, v68, v70
    v_lshlrev_b32 v33, 2, v2
    v_mov_b32 v38, 1
    ds_write_b32 v33, v40 offset:{L_QL}
    ds_write_b32 v33, v41 offset:{L_QL+256}
    s_waitcnt lgkmcnt(0)
    ds_write_b32 v63, v38 offset:{L_QF}
    """)
    stamp(a, "q_gathered")
    if HOLD == 3:
        a("s_barrier")
    a(f"""
    s_mov_b64 exec, 1
    buffer_atomic_add v38, v63, {R(S_DBG)}, s63 offen sc1
    s_mov_b64 exec, -1
    """)
    prefetch4(None)
    a("s_setprio 0")
    a.label("L_q_ok")
    stamp(a, "q_ready")
    for hh in range(2):
        for j in range(4):
            r = Q + 16*hh + 4*j
            a(f"ds_read_b128 v[{r}:{r+3}], v5 offset:{L_QL + 256*hh + 64*j}")
    a("s_mov_b32 s62, 16384")
    a(f"""
    s_mov_b32 s64, {hex(f2u(SCALE))}
    s_mov_b32 s65, {hex(f2u(LOG2E))}
    s_mov_b32 s66, 0x05040100
    s_mov_b32 s67, 0x07060302
    s_mov_b32 s68, {hex(f2u(24.0))}
    s_mov_b32 s63, 0
    """)
    for i in range(16):
        a(f"v_mov_b32 v{ACC+i}, 0")
    NM = 8; L = 10
    a(f"""
    v_mov_b32 v{NM}, {hex(f2u(1e30))}
    v_mov_b32 v{NM+1}, {hex(f2u(1e30))}
    v_mov_b32 v{L}, 0
    v_mov_b32 v{L+1}, 0
    s_waitcnt lgkmcnt(0)
    s_branch L_loop_entry
    """)
    S = 12; T = 20; RR = 28; PP = 32; TM = 36
    a.label("L_loop")
    for slot in range(4):
        kb = RING + 32*slot
        vb = kb + 16
        issue_loads((slot+3) % 4, "s62")
        a("s_add_u32 s62, s62, 4096")
        if slot == 0:
            a.label("L_loop_entry")
        a("s_waitcnt vmcnt(28)")
        for j in range(4):
            c0 = "0" if j == 0 else f"v[{D0}:{D0+3}]"
            c1 = "0" if j == 0 else f"v[{D1}:{D1+3}]"
            a(f"v_mfma_f32_16x16x32_bf16 v[{D0}:{D0+3}], v[{kb+4*j}:{kb+4*j+3}], v[{Q+4*j}:{Q+4*j+3}], {c0}")
            a(f"v_mfma_f32_16x16x32_bf16 v[{D1}:{D1+3}], v[{kb+4*j}:{kb+4*j+3}], v[{Q+16+4*j}:{Q+16+4*j+3}], {c1}")
        a("s_nop 7")
        a("s_nop 1")
        for h, D in enumerate((D0, D1)):
            a(f"v_cvt_pk_bf16_f32 v{RR+2*h}, v{D}, v{D+1}")
            a(f"v_cvt_pk_bf16_f32 v{RR+2*h+1}, v{D+2}, v{D+3}")
        for k in range(4):
            a(f"v_lshlrev_b32 v{S+2*k}, 16, v{RR+k}")
            a(f"v_and_b32 v{S+2*k+1}, 0xffff0000, v{RR+k}")
        for k in range(8):
            a(f"v_mul_f32 v{S+k}, s64, v{S+k}")
        for k in range(4):
            a(f"v_cvt_pk_bf16_f32 v{RR+k}, v{S+2*k}, v{S+2*k+1}")
        for k in range(4):
            a(f"v_lshlrev_b32 v{S+2*k}, 16, v{RR+k}")
            a(f"v_and_b32 v{S+2*k+1}, 0xffff0000, v{RR+k}")
        a.label(f"L_retry{slot}")
        for k in range(8):
            a(f"v_fma_f32 v{T+k}, v{S+k}, s65, v{NM + k//4}")
        a(f"""
        v_max3_f32 v{TM}, v{T}, v{T+1}, v{T+2}
        v_max3_f32 v{TM+1}, v{T+3}, v{T+4}, v{T+5}
        v_max3_f32 v{TM}, v{TM}, v{T+6}, v{T+7}
        v_max_f32 v{TM}, v{TM}, v{TM+1}
        v_cmp_lt_f32 vcc, s68, v{TM}
        s_cbranch_vccnz L_rescale{slot}
        """)
        for k in range(8):
            a(f"v_exp_f32 v{T+k}, v{T+k}")
        a("s_nop 0")
        for h in range(2):
            a(f"v_cvt_pk_bf16_f32 v{PP+2*h}, v{T+4*h}, v{T+4*h+1}")
            a(f"v_cvt_pk_bf16_f32 v{PP+2*h+1}, v{T+4*h+2}, v{T+4*h+3}")
        for h in range(2):
            a(f"v_add_f32 v{TM}, v{T+4*h}, v{T+4*h+1}")
            a(f"v_add_f32 v{TM+1}, v{T+4*h+2}, v{T+4*h+3}")
            a(f"v_add_f32 v{TM}, v{TM}, v{TM+1}")
            a(f"v_add_f32 v{L+h}, v{L+h}, v{TM}")
        a("s_waitcnt vmcnt(24)")
        for pr in range(2):
            va = vb + 8*pr
            vbb = va + 4
            for c in range(4):
                lo = TM + 2 + 2*(c % 2)
                hi = lo + 1
                a(f"v_perm_b32 v{lo}, v{vbb+c}, v{va+c}, s66")
                a(f"v_perm_b32 v{hi}, v{vbb+c}, v{va+c}, s67")
                for h in range(2):
                    a(f"v_dot2_f32_bf16 v{ACC+8*h+2*c}, v{lo}, v{PP+2*h+pr}, v{ACC+8*h+2*c}")
                    a(f"v_dot2_f32_bf16 v{ACC+8*h+2*c+1}, v{hi}, v{PP+2*h+pr}, v{ACC+8*h+2*c+1}")
    a(f"""
    s_add_u32 s63, s63, 1
    s_cmp_lt_u32 s63, 8
    s_cbranch_scc1 L_loop
    s_branch L_tail
    """)
    for slot in range(4):
        a.label(f"L_rescale{slot}")
        for h in range(2):
            a(f"""
            v_max3_f32 v{TM}, v{S+4*h}, v{S+4*h+1}, v{S+4*h+2}
            v_max_f32 v{TM}, v{TM}, v{S+4*h+3}
            v_mul_f32 v{TM}, s65, v{TM}
            v_max_f32 v{TM}, v{TM}, -v{NM+h}
            v_sub_f32 v{TM+1}, 0, v{TM}
            v_sub_f32 v{TM+2}, v{TM+1}, v{NM+h}
            v_exp_f32 v{TM+2}, v{TM+2}
            v_mov_b32 v{NM+h}, v{TM+1}
            s_nop 0
            v_mul_f32 v{L+h}, v{L+h}, v{TM+2}
            """)
            for i in range(8):
                a(f"v_mul_f32 v{ACC+8*h+i}, v{ACC+8*h+i}, v{TM+2}")
        a(f"s_branch L_retry{slot}")
    a.label("L_tail")
    stamp(a, "loop_done")
    a(f"""
    v_xor_b32 v12, 16, v2
    v_lshlrev_b32 v12, 2, v12
    v_xor_b32 v13, 32, v2
    v_lshlrev_b32 v13, 2, v13
    """)
    for addr in (12, 13):
        a(f"""
        ds_bpermute_b32 v14, v{addr}, v{NM if addr == 12 else 16}
        ds_bpermute_b32 v15, v{addr}, v{NM+1 if addr == 12 else 17}
        s_waitcnt lgkmcnt(0)
        v_min_f32 v16, v14, v{NM if addr == 12 else 16}
        v_min_f32 v17, v15, v{NM+1 if addr == 12 else 17}
        """)
    a(f"""
    v_sub_f32 v18, v16, v{NM}
    v_sub_f32 v19, v17, v{NM+1}
    v_exp_f32 v18, v18
    v_exp_f32 v19, v19
    s_nop 0
    v_mul_f32 v{L}, v{L}, v18
    v_mul_f32 v{L+1}, v{L+1}, v19
    """)
    for i in range(8):
        a(f"v_mul_f32 v{ACC+i}, v{ACC+i}, v18")
        a(f"v_mul_f32 v{ACC+8+i}, v{ACC+8+i}, v19")
    vals = [L, L+1] + [ACC+i for i in range(16)]
    for addr in (12, 13):
        for k, r in enumerate(vals):
            a(f"ds_bpermute_b32 v{20+k}, v{addr}, v{r}")
        a("s_waitcnt lgkmcnt(0)")
        for k, r in enumerate(vals):
            a(f"v_add_f32 v{r}, v{r}, v{20+k}")
    a(f"""
    v_and_b32 v14, 15, v2
    v_lshlrev_b32 v14, 5, v14
    s_lshl_b32 s62, s3, 10
    v_add_u32 v14, s62, v14
    ds_write_b128 v14, v[{ACC}:{ACC+3}] offset:{L_CB}
    ds_write_b128 v14, v[{ACC+4}:{ACC+7}] offset:{L_CB+16}
    ds_write_b128 v14, v[{ACC+8}:{ACC+11}] offset:{L_CB+512}
    ds_write_b128 v14, v[{ACC+12}:{ACC+15}] offset:{L_CB+528}
    v_sub_f32 v20, 0, v16
    v_mov_b32 v21, v{L}
    v_sub_f32 v22, 0, v17
    v_mov_b32 v23, v{L+1}
    s_lshl_b32 s62, s3, 4
    v_mov_b32 v14, s62
    ds_write_b128 v14, v[20:23] offset:{L_CM}
    s_waitcnt vmcnt(0) lgkmcnt(0)
    s_barrier
    s_cmp_eq_u32 s3, 0
    s_cbranch_scc1 L_A0
    s_cmp_lg_u32 s3, 7
    s_cbranch_scc1 L_waitB
    v_and_b32 v37, 15, v2
    v_lshlrev_b32 v37, 2, v37
    s_mov_b32 s70, 0
    """)
    a.label("L_poll_all")
    a(f"""
    buffer_load_dword v38, v37, {R(S_DBG)}, 0 offen sc1
    s_waitcnt vmcnt(0)
    v_cmp_ne_u32 vcc, 16, v38
    s_add_u32 s70, s70, 1
    s_cbranch_vccz L_waitB
    s_cmp_lt_u32 s70, {SPIN_MAX}
    s_cbranch_scc1 L_poll_all
    s_branch L_waitB
    """)
    a.label("L_A0")
    a(f"""
    v_lshrrev_b32 v14, 5, v2
    v_lshlrev_b32 v15, 3, v14
    """)
    for p in range(8):
        a(f"ds_read_b64 v[{20+2*p}:{21+2*p}], v15 offset:{L_CM + 16*p}")
    for p in range(8):
        a(f"ds_read_b128 v[{40+4*p}:{43+4*p}], v6 offset:{L_CB + 1024*p}")
    a("s_waitcnt lgkmcnt(0)")
    a("v_mov_b32 v16, v20")
    for p in range(1, 8):
        a(f"v_max_f32 v16, v16, v{20+2*p}")
    for p in range(8):
        a(f"v_sub_f32 v{20+2*p}, v{20+2*p}, v16")
        a(f"v_exp_f32 v{20+2*p}, v{20+2*p}")
    a("s_nop 0")
    a("v_mul_f32 v17, v20, v21")
    for c in range(4):
        a(f"v_mul_f32 v{36+c}, v20, v{40+c}")
    for p in range(1, 8):
        a(f"v_fmac_f32 v17, v{20+2*p}, v{21+2*p}")
        for c in range(4):
            a(f"v_fmac_f32 v{36+c}, v{20+2*p}, v{40+4*p+c}")
    a(f"""
    s_lshl_b32 s62, s2, 11
    s_add_u32 s62, s62, {WS_PO}
    buffer_store_dwordx4 v[36:39], v6, {R(S_WS)}, s62 offen sc1
    v_and_b32 v18, 31, v2
    v_cmp_eq_u32 vcc, 0, v18
    s_and_saveexec_b64 s[84:85], vcc
    buffer_store_dwordx2 v[16:17], v15, {R(S_WS)}, s62 offen offset:1024 sc1
    s_mov_b64 exec, s[84:85]
    """)
    stamp(a, "A_published")
    a(f"""
    v_lshrrev_b32 v14, 2, v2
    v_lshlrev_b32 v14, 11, v14
    v_and_b32 v15, 3, v2
    v_lshl_add_u32 v15, v15, 4, v14
    s_lshr_b32 s62, s2, 4
    s_lshl_b32 s62, s62, 15
    s_add_u32 s62, s62, {WS_PO}
    s_bfe_u32 s63, s2, 0x10003
    s_lshl_b32 s69, s63, 3
    s_add_u32 s69, s69, s62
    s_lshl_b32 s63, s63, 9
    s_add_u32 s62, s62, s63
    s_and_b32 s63, s2, 7
    s_lshl_b32 s63, s63, 6
    s_add_u32 s62, s62, s63
    """)
    poll_loop(a, "L_pollB",
              [f"buffer_load_dwordx4 v[20:23], v15, {R(S_WS)}, s62 offen sc1",
               f"buffer_load_dwordx2 v[24:25], v14, {R(S_WS)}, s69 offen offset:1024 sc1"],
              [20, 21, 22, 23, 24, 25], 26)
    stamp(a, "B_gathered")
    a(f"""
    v_mov_b32 v26, v24
    s_nop 1
    v_max_f32_dpp v26, v26, v26 row_ror:4 row_mask:0xf bank_mask:0xf
    s_nop 1
    v_max_f32_dpp v26, v26, v26 row_ror:8 row_mask:0xf bank_mask:0xf
    s_nop 1
    ds_bpermute_b32 v27, v12, v26
    s_waitcnt lgkmcnt(0)
    v_max_f32 v26, v26, v27
    s_nop 0
    ds_bpermute_b32 v27, v13, v26
    s_waitcnt lgkmcnt(0)
    v_max_f32 v26, v26, v27
    v_sub_f32 v24, v24, v26
    v_exp_f32 v24, v24
    s_nop 0
    v_mul_f32 v25, v25, v24
    v_mul_f32 v20, v20, v24
    v_mul_f32 v21, v21, v24
    v_mul_f32 v22, v22, v24
    v_mul_f32 v23, v23, v24
    s_nop 1
    """)
    vals = [20, 21, 22, 23, 25]
    for rot in (4, 8):
        for r in vals:
            a(f"v_add_f32_dpp v{r}, v{r}, v{r} row_ror:{rot} row_mask:0xf bank_mask:0xf")
        a("s_nop 1")
    for addr in (12, 13):
        for k, r in enumerate(vals):
            a(f"ds_bpermute_b32 v{30+k}, v{addr}, v{r}")
        a("s_waitcnt lgkmcnt(0)")
        for k, r in enumerate(vals):
            a(f"v_add_f32 v{r}, v{r}, v{30+k}")
    a(f"""
    v_rcp_f32 v26, v25
    s_nop 0
    """)
    for r in (20, 21, 22, 23):
        a(f"""
        v_mul_f32 v27, v{r}, v26
        v_fma_f32 v28, -v27, v25, v{r}
        v_fma_f32 v{r}, v28, v26, v27
        """)
    a(f"""
    v_cvt_pk_bf16_f32 v20, v20, v21
    v_cvt_pk_bf16_f32 v21, v22, v23
    v_and_b32 v15, 3, v2
    v_lshlrev_b32 v15, 3, v15
    ds_write_b64 v15, v[20:21] offset:{L_O}
    s_waitcnt lgkmcnt(0)
    """)
    a.label("L_waitB")
    a("s_barrier")
    a(f"""
    s_cmp_ge_u32 s3, 5
    s_cbranch_scc1 L_B_done
    v_mov_b32 v14, 0
    v_lshlrev_b32 v15, 2, v0
    ds_read_b128 v[20:23], v14 offset:{L_O}
    ds_read_b128 v[24:27], v14 offset:{L_O+16}
    """)
    for r in range(16):
        a(f"ds_read_b32 v{30+r}, v15 offset:{L_WO + 1152*r}")
    a(f"""
    v_mov_b32 v16, 0
    v_mov_b32 v17, 0
    s_waitcnt lgkmcnt(0)
    """)
    for p in range(8):
        a(f"v_perm_b32 v18, v{31+2*p}, v{30+2*p}, s66")
        a(f"v_perm_b32 v19, v{31+2*p}, v{30+2*p}, s67")
        a(f"v_dot2_f32_bf16 v16, v18, v{20+p}, v16")
        a(f"v_dot2_f32_bf16 v17, v19, v{20+p}, v17")
    a(f"""
    s_mul_i32 s62, s2, 2304
    s_add_u32 s62, s62, {WS_PA}
    v_lshlrev_b32 v15, 3, v0
    v_cmp_gt_u32 vcc, 288, v0
    s_and_saveexec_b64 s[84:85], vcc
    s_nop 1
    buffer_store_dwordx2 v[16:17], v15, {R(S_WS)}, s62 offen sc1
    s_mov_b64 exec, s[84:85]
    """)
    a.label("L_B_done")
    stamp(a, "B_published")
    a(f"""
    s_cmp_lt_u32 s2, {N_D}
    s_cbranch_scc1 L_stageD
    s_cmp_ge_u32 s2, {C0 + N_C}
    s_cbranch_scc1 L_end
    """)
    a(f"""
    s_sub_u32 s71, s2, {C0}
    v_lshrrev_b32 v14, 2, v0
    s_movk_i32 s62, 2304
    v_mul_lo_u32 v14, v14, s62
    v_and_b32 v15, 3, v0
    v_lshl_add_u32 v14, v15, 4, v14
    s_lshl_b32 s62, s71, 6
    s_add_u32 s62, s62, {WS_PA}
    s_add_u32 s63, s62, {128*2304}
    """)
    a(f"""
    v_and_b32 v40, 15, v2
    v_lshlrev_b32 v41, 1, v40
    s_lshl_b32 s69, s71, 5
    buffer_load_ushort v42, v41, {R(S_X)}, s69 offen
    buffer_load_ushort v43, v41, {R(S_B2)}, s69 offen
    """)
    poll_loop(a, "L_pollC",
              [f"buffer_load_dwordx4 v[20:23], v14, {R(S_WS)}, s62 offen sc1",
               f"buffer_load_dwordx4 v[24:27], v14, {R(S_WS)}, s63 offen sc1"],
              list(range(20, 28)), 28)
    stamp(a, "C_gathered")
    def reduce16(lbl, nsrc):
        a("s_nop 1")
        for rot in (4, 8):
            for r in range(20, 24):
                a(f"v_add_f32_dpp v{r}, v{r}, v{r} row_ror:{rot} row_mask:0xf bank_mask:0xf")
            a("s_nop 1")
        a(f"""
        v_lshrrev_b32 v28, 4, v2
        s_lshl_b32 s62, s3, 2
        v_add_u32 v28, s62, v28
        v_lshlrev_b32 v28, 6, v28
        v_lshl_add_u32 v28, v15, 4, v28
        ds_write_b128 v28, v[20:23] offset:{L_RD}
        s_waitcnt lgkmcnt(0)
        s_barrier
        """)
    for c in range(4):
        a(f"v_add_f32 v{20+c}, v{20+c}, v{24+c}")
    reduce16("C", 2)
    a(f"""
    s_cmp_lg_u32 s3, 0
    s_cbranch_scc1 L_C_done
    v_lshlrev_b32 v28, 2, v40
    """)
    for p in range(32):
        a(f"ds_read_b32 v{160+p}, v28 offset:{L_RD + 64*p}")
    a("s_waitcnt lgkmcnt(0)")
    for p in range(1, 32):
        a(f"v_add_f32 v160, v160, v{160+p}")
    rne(a, 160, 160)
    a(f"""
    v_lshlrev_b32 v42, 16, v42
    v_add_f32 v44, v42, v160
    """)
    rne(a, 44, 44)
    a(f"""
    s_lshl_b32 s62, s71, 6
    s_add_u32 s62, s62, {WS_H}
    v_cmp_gt_u32 vcc, 16, v2
    s_and_saveexec_b64 s[84:85], vcc
    s_nop 1
    buffer_store_dword v44, v28, {R(S_WS)}, s62 offen sc1
    s_mov_b64 exec, s[84:85]
    """)
    a.label("L_C_done")
    stamp(a, "C_published")
    a(f"""
    s_barrier
    s_lshl_b32 s62, s71, 6
    s_add_u32 s62, s62, {WS_PM}
    s_add_u32 s63, s62, {128*2304}
    s_cmp_lg_u32 s3, 0
    s_cbranch_scc1 L_pollE1
    """)
    poll_loop(a, "L_pollE0",
              [f"buffer_load_dwordx4 v[20:23], v14, {R(S_WS)}, s62 offen sc1",
               f"buffer_load_dwordx4 v[24:27], v14, {R(S_WS)}, s63 offen sc1"],
              list(range(20, 28)), 28)
    for c in range(4):
        a(f"v_add_f32 v{20+c}, v{20+c}, v{24+c}")
    a("s_branch L_pollE1_done")
    poll_loop(a, "L_pollE1",
              [f"buffer_load_dwordx4 v[20:23], v14, {R(S_WS)}, s62 offen sc1"],
              list(range(20, 24)), 28)
    stamp(a, "E_gathered")
    reduce16("E", 1)
    a(f"""
    s_cmp_lg_u32 s3, 0
    s_cbranch_scc1 L_end
    v_lshlrev_b32 v28, 2, v40
    """)
    for p in range(32):
        a(f"ds_read_b32 v{160+p}, v28 offset:{L_RD + 64*p}")
    a("s_waitcnt lgkmcnt(0)")
    for p in range(1, 32):
        a(f"v_add_f32 v160, v160, v{160+p}")
    rne(a, 160, 160)
    a(f"""
    v_lshlrev_b32 v43, 16, v43
    v_add_f32 v160, v160, v43
    """)
    rne(a, 160, 160)
    a(f"""
    v_add_f32 v160, v160, v44
    v_cvt_pk_bf16_f32 v160, v160, v160
    v_cmp_gt_u32 vcc, 16, v2
    s_and_saveexec_b64 s[84:85], vcc
    s_nop 1
    buffer_store_short v160, v41, {R(S_OUT)}, s69 offen
    s_mov_b64 exec, s[84:85]
    """)
    stamp(a, "E_done")
    a("s_branch L_end")
    a.label("L_stageD")
    a(f"""
    v_and_b32 v40, 31, v2
    v_lshlrev_b32 v41, 1, v40
    s_lshl_b32 s69, s2, 6
    buffer_load_ushort v42, v41, {R(S_B1)}, s69 offen
    s_cmp_lg_u32 s3, 0
    s_cbranch_scc1 L_waitD
    v_lshlrev_b32 v14, 2, v2
    s_mov_b32 s62, {WS_H}
    """)
    poll_loop(a, "L_pollD",
              [f"buffer_load_dword v{20+i}, v14, {R(S_WS)}, s62 offen offset:{256*i} sc1" for i in range(9)],
              list(range(20, 29)), 30)
    stamp(a, "D_gathered")
    layernorm9(a, 20, 30, 62)
    for i in range(9):
        a(f"ds_write_b32 v14, v{20+i} offset:{L_HN + 256*i}")
    a("s_waitcnt lgkmcnt(0)")
    a.label("L_waitD")
    a("s_barrier")
    a(f"""
    v_lshrrev_b32 v14, 3, v2
    s_mul_i32 s62, s3, 72
    v_add_u32 v14, s62, v14
    v_lshlrev_b32 v15, 2, v14
    v_lshlrev_b32 v14, 6, v14
    v_and_b32 v16, 7, v2
    v_lshl_add_u32 v14, v16, 3, v14
    """)
    for i in range(9):
        a(f"ds_read_b64 v[{20+2*i}:{21+2*i}], v14 offset:{L_W1 + 512*i}")
    for i in range(9):
        a(f"ds_read_b32 v{44+i}, v15 offset:{L_HN + 32*i}")
    for c in range(4):
        a(f"v_mov_b32 v{54+c}, 0")
    a("s_waitcnt lgkmcnt(0)")
    for i in range(9):
        for d in range(2):
            w = 20 + 2*i + d
            a(f"v_lshlrev_b32 v58, 16, v{w}")
            a(f"v_and_b32 v59, 0xffff0000, v{w}")
            a(f"v_fmac_f32 v{54+2*d}, v{44+i}, v58")
            a(f"v_fmac_f32 v{54+2*d+1}, v{44+i}, v59")
    a(f"""
    v_lshlrev_b32 v14, 4, v0
    ds_write_b128 v14, v[54:57] offset:{L_RD}
    s_waitcnt lgkmcnt(0)
    s_barrier
    s_cmp_ge_u32 s3, 5
    s_cbranch_scc1 L_end
    """)
    a(f"""
    v_lshrrev_b32 v14, 5, v2
    v_lshlrev_b32 v14, 12, v14
    v_lshl_add_u32 v14, v40, 2, v14
    """)
    for p in range(32):
        a(f"ds_read_b32 v{160+p}, v14 offset:{L_RD + 128*p}")
    a("v_lshlrev_b32 v15, 2, v0")
    a(f"v_add_u32 v15, {L_W2}, v15")
    for r in range(32):
        a(f"ds_read_b32 v{192+r}, v15 offset:{1152*r}")
    a("s_waitcnt lgkmcnt(32)") if False else a("s_waitcnt lgkmcnt(0)")
    for p in range(1, 32):
        a(f"v_add_f32 v160, v160, v{160+p}")
    a(f"""
    s_nop 0
    ds_bpermute_b32 v161, v13, v160
    s_waitcnt vmcnt(0) lgkmcnt(0)
    v_add_f32 v160, v160, v161
    """)
    rne(a, 160, 160)
    a(f"""
    v_lshlrev_b32 v42, 16, v42
    v_add_f32 v160, v160, v42
    """)
    rne(a, 160, 160)
    a(f"""
    v_max_f32 v160, 0, v160
    v_mul_f32 v160, v160, v160
    """)
    rne(a, 160, 160)
    a(f"""
    s_nop 1
    v_mov_b32_dpp v161, v160 quad_perm:[1,0,3,2] row_mask:0xf bank_mask:0xf
    s_nop 1
    v_cvt_pk_bf16_f32 v162, v160, v161
    s_nop 1
    """)
    for k in range(16):
        a(f"v_readlane_b32 s{72+k}, v162, {2*k}")
    a(f"""
    v_mov_b32 v16, 0
    v_mov_b32 v17, 0
    s_nop 3
    """)
    for p in range(16):
        a(f"v_perm_b32 v18, v{193+2*p}, v{192+2*p}, s66")
        a(f"v_perm_b32 v19, v{193+2*p}, v{192+2*p}, s67")
        a(f"v_dot2_f32_bf16 v16, v18, s{72+p}, v16")
        a(f"v_dot2_f32_bf16 v17, v19, s{72+p}, v17")
    a(f"""
    s_mul_i32 s62, s2, 2304
    s_add_u32 s62, s62, {WS_PM}
    v_lshlrev_b32 v15, 3, v0
    v_cmp_gt_u32 vcc, 288, v0
    s_and_saveexec_b64 s[84:85], vcc
    s_nop 1
    buffer_store_dwordx2 v[16:17], v15, {R(S_WS)}, s62 offen sc1
    s_mov_b64 exec, s[84:85]
    """)
    stamp(a, "D_published")
    a.label("L_end")
    a("s_endpgm")
    return a, name

def main():
    a, name = gen()
    hdr = open(f"cdna_kernels/{NAME}.s.ref").read().split("; Override launch")[0]
    out = hdr
    out += f"; @launch grid=(256,1,1) block=(512,1,1) lds={L_END}\n"
    out += '.amdgcn_target "amdgcn-amd-amdhsa--gfx950"\n.text\n'
    out += a.text()
    out += '.section .rodata,"a"\n.p2align 6\n'
    out += f""".amdhsa_kernel {name}
  .amdhsa_next_free_vgpr 256
  .amdhsa_next_free_sgpr 102
  .amdhsa_accum_offset 256
  .amdhsa_group_segment_fixed_size 0
  .amdhsa_kernarg_size 104
  .amdhsa_user_sgpr_count 2
  .amdhsa_user_sgpr_kernarg_segment_ptr 1
  .amdhsa_system_sgpr_workgroup_id_x 1
.end_amdhsa_kernel
"""
    args = [x for x in sys.argv[1:] if not x.startswith("--")]
    dst = args[0] if args else f"cdna_kernels/{NAME}.s"
    open(dst, "w").write(out)

main()
```
